```python
import torch

def _softmax(x, axis=-1):
    return torch.softmax(x, dim=axis)

def _gelu(x):
    return torch.nn.functional.gelu(x, approximate='tanh')

def _silu(x):
    return torch.nn.functional.silu(x)

def _sigmoid(x):
    return torch.sigmoid(x)

def _layernorm(x, axis=-1, eps=1e-05):
    m = x.mean(dim=axis, keepdim=True)
    v = x.var(dim=axis, keepdim=True, unbiased=False)
    return (x - m) / torch.sqrt(v + eps)

def _scatter_add(tgt, idx, src, axis=0):
    return tgt.clone().index_add_(axis, idx, src)

def _segment_sum(src, seg, n):
    out = torch.zeros((n,) + src.shape[1:], dtype=src.dtype)
    return out.index_add_(0, seg, src)

def _pad(x, pw):
    flat = tuple((v for pair in reversed(pw) for v in pair))
    return torch.nn.functional.pad(x, flat)
kernel_name = 'adaLN_cond__gqa_block_cached__geglu_ffn__decode'

def setup_inputs():

    _w = lambda a: (lambda t: t.to(torch.bfloat16) if t.is_floating_point() else t)(torch.as_tensor(a))

    def _A_setup():
        B, Sq, D = (1, 1, 576)
        Hq, Hkv, Sk, Dh = (32, 16, 32768, 128)
        assert Hq % Hkv == 0, (Hq, Hkv)
        return {'x': _w((lambda *s: torch.randn(*s, dtype=torch.bfloat16) * 0.1)(B, Sq, D)), 'k_cache': _w((lambda *s: torch.randn(*s, dtype=torch.bfloat16) * 0.8)(B, Hkv, Sk, Dh)), 'v_cache': _w((lambda *s: torch.randn(*s, dtype=torch.bfloat16) * 1.6)(B, Hkv, Sk, Dh)), 'wq': _w((lambda *s: torch.randn(*s, dtype=torch.bfloat16) * 0.8)(D, Hq * Dh) * D ** (-0.5)), 'wo': _w((lambda *s: torch.randn(*s, dtype=torch.bfloat16) * 1.6)(Hq * Dh, D) * (Hq * Dh) ** (-0.5))}
    _A_in = _A_setup()

    def _B_setup():
        B, S, D, F = (1, 1, 576, 4608)
        return {'x': _w((lambda *s: torch.randn(*s, dtype=torch.bfloat16) * 0.1)(B, S, D)), 'w_gate': _w((lambda *s: torch.randn(*s, dtype=torch.bfloat16) * 0.4)(D, F)), 'w_up': _w((lambda *s: torch.randn(*s, dtype=torch.bfloat16) * 0.4)(D, F)), 'w_down': _w((lambda *s: torch.randn(*s, dtype=torch.bfloat16) * 0.4)(F, D))}
    _B_in = _B_setup()
    return {'A_x': _A_in['x'], 'A_k_cache': _A_in['k_cache'], 'A_v_cache': _A_in['v_cache'], 'A_wq': _A_in['wq'], 'A_wo': _A_in['wo'], 'B_x': _B_in['x'], 'B_w_gate': _B_in['w_gate'], 'B_w_up': _B_in['w_up'], 'B_w_down': _B_in['w_down'], 'c': _w((lambda *s: torch.randn(*s, dtype=torch.bfloat16) * 0.4)(1, 576) * 8.0), 'w_mod': _w((lambda *s: torch.randn(*s, dtype=torch.bfloat16) * 0.4)(576, 6 * 576) * 576 ** (-0.5) * 8.0)}

def reference(A_x, A_k_cache, A_v_cache, A_wq, A_wo, B_x, B_w_gate, B_w_up, B_w_down, c, w_mod):

    def _A_ref(x, k_cache, v_cache, wq, wo):
        B, Sq, D = x.shape
        Hq, Dh = (32, 128)
        Hkv = k_cache.shape[1]
        rep = Hq // Hkv
        q = (lambda x, *d: x.permute(*d))((x @ wq).reshape(B, Sq, Hq, Dh), 0, 2, 1, 3)
        k = (lambda x, n, axis: torch.repeat_interleave(x, n, dim=axis))(k_cache, rep, axis=1)
        v = (lambda x, n, axis: torch.repeat_interleave(x, n, dim=axis))(v_cache, rep, axis=1)
        scores = torch.einsum('bhqd,bhkd->bhqk', q, k) * Dh ** (-0.5)
        p = _softmax(scores, axis=-1)
        o = torch.einsum('bhqk,bhkd->bhqd', p, v)
        return (lambda x, *d: x.permute(*d))(o, 0, 2, 1, 3).reshape(B, Sq, Hq * Dh) @ wo

    def _B_ref(x, w_gate, w_up, w_down):
        return _gelu(x @ w_gate) * (x @ w_up) @ w_down
    x = A_x
    mod = (_silu(c) @ w_mod).reshape(c.shape[0], 6, 1, -1)
    sa, ca, ga, sb, cb, gb = (mod[:, 0].clone(), mod[:, 1].clone(), mod[:, 2].clone(), mod[:, 3].clone(), mod[:, 4].clone(), mod[:, 5].clone())
    h = _layernorm(x, axis=-1) * (1 + ca) + sa
    x = x + ga * _A_ref(h, A_k_cache, A_v_cache, A_wq, A_wo)
    h = _layernorm(x, axis=-1) * (1 + cb) + sb
    x = x + gb * _B_ref(h, B_w_gate, B_w_up, B_w_down)
    return x
```

```python
import re

TRANS = ('v_exp_f32', 'v_log_f32', 'v_rcp_f32', 'v_rsq_f32', 'v_sqrt_f32', 'v_sin_f32', 'v_cos_f32')

def _regs(tok):
    tok = tok.strip()
    tok = tok.lstrip('-')
    m = re.fullmatch(r'abs\((.*)\)', tok)
    if m: tok = m.group(1)
    tok = tok.strip('|')
    m = re.fullmatch(r'([vsa])\[(\d+):(\d+)\]', tok)
    if m:
        return {(m.group(1), i) for i in range(int(m.group(2)), int(m.group(3)) + 1)}
    m = re.fullmatch(r'([vsa])(\d+)', tok)
    if m:
        return {(m.group(1), int(m.group(2)))}
    if tok in ('vcc', 'vcc_lo', 'vcc_hi'): return {('vcc', 0)}
    if tok in ('exec', 'exec_lo', 'exec_hi'): return {('exec', 0)}
    if tok == 'm0': return {('m0', 0)}
    return set()

class Ins:
    __slots__ = ('text', 'op', 'kind', 'dst', 'src', 'dpp', 'states', 'passes', 'srcc', 'wide_store')
    def __init__(self, text):
        self.text = text
        t = text.split(';')[0].strip()
        parts = t.split(None, 1)
        self.op = op = parts[0]
        rest = parts[1] if len(parts) > 1 else ''
        ops = []
        depth = 0; cur = ''
        for ch in rest:
            if ch == '[': depth += 1
            if ch == ']': depth -= 1
            if ch == ',' and depth == 0:
                ops.append(cur); cur = ''
            else:
                cur += ch
        if cur.strip(): ops.append(cur)
        mods = ''
        if ops:
            last = ops[-1].strip().split()
            if last:
                ops[-1] = last[0]
                mods = ' '.join(last[1:])
        ops = [o.strip() for o in ops]
        self.dpp = ('_dpp' in op) or ('quad_perm' in mods) or ('row_' in mods)
        self.states = 1
        self.passes = 0
        self.srcc = set()
        self.wide_store = False
        R = [_regs(o) for o in ops]
        self.dst = set(); self.src = set()
        if op == 's_nop':
            self.kind = 'nop'; self.states = int(ops[0], 0) + 1
        elif op.startswith('v_mfma'):
            self.kind = 'mfma'; self.dst = R[0]; self.src = R[1] | R[2] | R[3]; self.srcc = R[3]
            self.passes = 8 if '32x32' in op else 4
        elif op.startswith('v_cmp'):
            self.kind = 'valu'; self.dst = R[0]; self.src = set().union(*R[1:])
        elif op.startswith('v_readfirstlane') or op.startswith('v_readlane'):
            self.kind = 'readlane'; self.dst = R[0]; self.src = set().union(*R[1:])
        elif op.startswith('v_permlane'):
            self.kind = 'permlane'; self.dst = R[0] | R[1]; self.src = R[0] | R[1]
        elif op.startswith('v_'):
            self.kind = 'trans' if op.replace('_e32', '').replace('_e64', '') in TRANS else 'valu'
            self.dst = set(R[0]); k = 1
            if '_co_' in op:
                self.dst |= R[1]; k = 2
            self.src = set().union(*R[k:]) if len(R) > k else set()
            if op.startswith('v_fmac') or op.startswith('v_mac') or op.startswith('v_dot2c') or op.startswith('v_writelane'):
                self.src |= R[0]
            if op.startswith('v_cndmask') and len(ops) == 3:
                self.src |= {('vcc', 0)}
        elif op.startswith('buffer_load') or op.startswith('global_load'):
            self.kind = 'vmem'; self.dst = R[0]; self.src = set().union(*R[1:])
        elif op.startswith('buffer_atomic') or op.startswith('global_atomic'):
            self.kind = 'vmem'; self.src = set().union(*R)
            if 'sc0' in mods: self.dst = R[0]
        elif op.startswith('buffer_store') or op.startswith('global_store'):
            self.kind = 'vmem'; self.src = set().union(*R)
            self.wide_store = ('x3' in op or 'x4' in op)
            if self.wide_store:
                self.srcc = R[0] if op.startswith('buffer') else R[1]
        elif op.startswith('ds_read') or op.startswith('ds_bpermute') or op.startswith('ds_swizzle') or '_rtn' in op:
            self.kind = 'ds'; self.dst = R[0]; self.src = set().union(*R[1:])
        elif op.startswith('ds_'):
            self.kind = 'ds'; self.src = set().union(*R)
        elif op.startswith('s_'):
            self.kind = 'salu'
            if op.startswith(('s_cmp', 's_cbranch', 's_branch', 's_waitcnt', 's_barrier', 's_sleep', 's_endpgm', 's_setprio', 's_bitcmp')):
                self.src = set().union(*R) if R else set()
            else:
                self.dst = R[0] if R else set(); self.src = set().union(*R[1:]) if len(R) > 1 else set()
                if 'saveexec' in op: self.dst |= {('exec', 0)}
        else:
            raise ValueError('unknown op ' + text)

def need(prev, cur):
    n = 0
    pv = {r for r in prev.dst if r[0] in 'va' and r[0] != 'vcc'}
    ps = {r for r in prev.dst if r[0] == 's' or r[0] == 'vcc'}
    isvalu = prev.kind in ('valu', 'trans', 'readlane', 'permlane')
    if isvalu:
        if cur.kind == 'mfma' and pv & cur.src: n = max(n, 2)
        if cur.dpp and pv & cur.src: n = max(n, 2)
        if cur.kind == 'readlane' and pv & cur.src: n = max(n, 1)
        if cur.kind == 'permlane' and pv & cur.src: n = max(n, 2)
        if ps:
            if cur.kind in ('valu', 'trans', 'permlane', 'mfma') and ps & cur.src: n = max(n, 2)
            if cur.kind == 'readlane' and ps & cur.src: n = max(n, 4)
            if cur.kind == 'vmem' and ps & cur.src: n = max(n, 5)
            if cur.kind == 'salu' and ps & cur.src: n = max(n, 4)
        if ('exec', 0) in prev.dst:
            n = max(n, 5)
        if prev.kind == 'trans' and cur.kind in ('valu', 'readlane', 'permlane', 'mfma', 'trans') and pv & cur.src: n = max(n, 1)
    if prev.kind == 'mfma':
        p = prev.passes
        tab_rw = {4: 8, 8: 12}[p]
        if cur.kind == 'mfma':
            if prev.dst & (cur.src - cur.srcc): n = max(n, tab_rw)
            if prev.dst & cur.srcc:
                if prev.dst == cur.srcc and cur.passes == p: pass
                else: n = max(n, {4: 6, 8: 10}[p])
            elif prev.dst & cur.dst and not (prev.dst & cur.srcc):
                n = max(n, tab_rw)
        else:
            if prev.dst & (cur.src | cur.dst): n = max(n, tab_rw)
            if cur.kind in ('valu', 'trans', 'readlane', 'permlane') and prev.srcc & cur.dst: n = max(n, {4: 3, 8: 7}[p])
    if prev.wide_store and cur.kind in ('valu', 'trans', 'permlane', 'mfma') and prev.srcc & cur.dst: n = max(n, 2)
    if prev.wide_store and cur.kind in ('vmem', 'ds') and prev.srcc & cur.dst: n = max(n, 1)
    if prev.kind == 'salu' and ('m0', 0) in prev.dst and cur.kind in ('vmem', 'ds'): n = max(n, 1)
    return n

class Asm:
    def __init__(self):
        self.lines = []
        self.hist = []
        self.nops = 0
        self.uid = 0
    def raw(self, s):
        self.lines.append(s)
    def label(self, name):
        self.lines.append(f'{name}:')
    def newlabel(self, p='L'):
        self.uid += 1
        return f'{p}_{self.uid}'
    def __call__(self, text):
        for ln in text.strip().split('\n'):
            ln = ln.strip()
            if not ln or ln.startswith(';'):
                if ln: self.lines.append('  ' + ln)
                continue
            if ln.endswith(':'):
                self.label(ln[:-1]); continue
            ins = Ins(ln)
            dist = 0; req = 0
            for prev in reversed(self.hist):
                r = need(prev, ins) - dist
                if r > req: req = r
                dist += prev.states
                if dist >= 16: break
            while req > 0:
                k = min(req, 16)
                nop = Ins(f's_nop {k-1}')
                self.lines.append(f'  s_nop {k-1}')
                self.hist.append(nop); self.nops += 1
                req -= k
            self.lines.append('  ' + ln)
            self.hist.append(ins)
            if len(self.hist) > 40: self.hist = self.hist[-24:]
    def text(self):
        return '\n'.join(self.lines) + '\n'
```

```python
import sys, os, argparse
sys.path.insert(0, os.path.dirname(os.path.abspath(__file__)))
from asmlib import Asm

NAME = 'adaLN_cond__gqa_block_cached__geglu_ffn__decode'

WS_EPOCH = 0x0
WS_MODG  = 0x1000
WS_QG    = 0x8000
WS_STATS = 0xC000
WS_READY = 0xE000
WS_OPART = 0x10000
WS_APART = 0x50000
WS_DPART = 0x60000
WS_DBG   = 0xC0000
WS_DUMP  = 0x100000
WS_SIZE  = 0x800000

L_FQ, L_FS, L_CSTAT, L_CO, L_CH0, L_CH1, L_CH2 = 0, 4, 8, 12, 16, 20, 24
L_GSTAT = 0x40
L_QL    = 0x100
L_STAT  = 0x400
L_OP    = 0x800
L_T     = 0x2800
L_PART0 = 0x3200
L_PART1 = 0x3B00
L_PART2 = 0x4400
L_X2    = 0x4D00
L_GB    = 0x5600
L_DP    = 0x5F00
LDS_SIZE = 0xA700
PSTR = 72

LOG2E = 0x3fb8aa3b
def fbits(x):
    import struct
    return struct.unpack('<I', struct.pack('<f', x))[0]

DPPALL = 'row_mask:0xf bank_mask:0xf'

class Gen:
    def __init__(self, L=24, W=4, WA=6, dbg=False, wpol='nt', gupol='nt'):
        self.a = Asm()
        self.L, self.W, self.WA, self.dbg = L, W, WA, dbg
        self.wpol, self.gupol = wpol, gupol

    def R(self, dst, src):
        self.a(f'v_cvt_pk_bf16_f32 {dst}, 0, {src}')

    def dpp_red(self, op, regs, steps):
        a = self.a
        for st in steps:
            if st in ('x1', 'x2', 'hm', 'rm', 'ror4', 'ror8'):
                m = {'x1': 'quad_perm:[1,0,3,2]', 'x2': 'quad_perm:[2,3,0,1]', 'hm': 'row_half_mirror',
                     'rm': 'row_mirror', 'ror4': 'row_ror:4', 'ror8': 'row_ror:8'}[st]
                for (r, t) in regs:
                    a(f'{op}_dpp {r}, {r}, {r} {m} {DPPALL}')
            else:
                ins = {'p16': 'v_permlane16_swap_b32', 'p32': 'v_permlane32_swap_b32'}[st]
                for (r, t) in regs:
                    a(f'v_mov_b32 {t}, {r}')
                for (r, t) in regs:
                    a(f'{ins} {r}, {t}')
                for (r, t) in regs:
                    a(f'{op} {r}, {r}, {t}')

    def stamp(self, idx):
        if not self.dbg: return
        a = self.a
        a('s_memrealtime s[96:97]')
        a('s_waitcnt lgkmcnt(0)')
        a(f'v_writelane_b32 v{self.vstamp}, s96, {idx}')

    def stamp_flush(self, vt):
        if not self.dbg: return
        a = self.a
        a('s_mul_i32 s96, s2, 12')
        a('s_add_u32 s96, s96, s3')
        a('s_lshl_b32 s96, s96, 6')
        a(f's_add_u32 s96, s96, {WS_DBG}')
        a(f'v_lshlrev_b32 {vt}, 2, v0')
        a('s_mov_b64 exec, 0xffff')
        a(f'buffer_store_dword v{self.vstamp}, {vt}, s[16:19], s96 offen')
        a('s_mov_b64 exec, -1')

    def dump(self, slot, r0, vt='v23'):
        if not self.dbg: return
        a = self.a
        a('s_lshl_b32 s96, s2, 2')
        a('s_add_u32 s96, s96, s57')
        a('s_lshl_b32 s96, s96, 10')
        a(f's_add_u32 s96, s96, {WS_DUMP + slot * 1048576}')
        a(f'v_lshlrev_b32 {vt}, 4, v0')
        a(f'buffer_store_dwordx4 v[{r0}:{r0+3}], {vt}, s[16:19], s96 offen')
        a('s_waitcnt vmcnt(0)')

    def spin_lds(self, off, val, vz, vt, maxit=40000, sleep=1, code=0):
        a = self.a
        lp = a.newlabel('SP'); out = a.newlabel('SPO')
        a(f's_mov_b32 s90, {maxit}')
        a.label(lp)
        a(f'ds_read_b32 {vt}, {vz} offset:{off}')
        a('s_waitcnt lgkmcnt(0)')
        a(f'v_readfirstlane_b32 s91, {vt}')
        a(f's_cmp_eq_u32 s91, {val}')
        a(f's_cbranch_scc1 {out}')
        a(f's_sleep {sleep}')
        a('s_sub_u32 s90, s90, 1')
        a(f's_cbranch_scc0 {lp}')
        a(f's_or_b32 s95, s95, {1 << code}')
        a.label(out)

    def poll(self, loads, check, execm, maxit=4000, sleep=2, code=0, tmp=None):
        a = self.a
        lp = a.newlabel('PL'); out = a.newlabel('PLO')
        a(f's_mov_b32 s90, {maxit}')
        a.label(lp)
        for (d, vo, so, imm) in loads:
            a(f'buffer_load_dwordx4 v[{d}:{d+3}], {vo}, s[16:19], {so} offen offset:{imm} sc1')
        a('s_waitcnt vmcnt(0)')
        if check[0] == 'tag':
            regs = [d + k for (d, _, _, _) in loads for k in check[1]]
            a(f'v_xor_b32 {tmp}, s56, v{regs[0]}')
            for r in regs[1:]:
                a(f'v_xor_b32 {self.tmp2}, s56, v{r}')
                a(f'v_or_b32 {tmp}, {tmp}, {self.tmp2}')
            a(f'v_cmp_eq_u32 vcc, 0, {tmp}')
        else:
            regs = [d + k for (d, _, _, _) in loads for k in range(4)]
            a(f'v_min_u32 {tmp}, v{regs[0]}, v{regs[1]}')
            i = 2
            while i < len(regs):
                a(f'v_min3_u32 {tmp}, {tmp}, v{regs[i]}, v{regs[i+1]}')
                i += 2
            a(f'v_cmp_ne_u32 vcc, 0, {tmp}')
        a(f's_cmp_eq_u64 vcc, {execm if execm else "-1"}')
        a(f's_cbranch_scc1 {out}')
        a(f's_sleep {sleep}')
        a('s_sub_u32 s90, s90, 1')
        a(f's_cbranch_scc0 {lp}')
        a(f's_or_b32 s95, s95, {1 << code}')
        a.label(out)

    def prologue(self):
        a = self.a
        a('s_cmp_ge_u32 s2, 256')
        a('s_cbranch_scc1 L_END')
        a('s_load_dwordx2 s[8:9], s[0:1], 8')
        a('s_load_dwordx2 s[12:13], s[0:1], 16')
        a('s_load_dwordx2 s[16:17], s[0:1], 104')
        a('v_lshrrev_b32 v1, 6, v0')
        a('v_and_b32 v0, 63, v0')
        a('v_readfirstlane_b32 s3, v1')
        a('s_mov_b32 s10, 0x8000000'); a('s_mov_b32 s11, 0x20000')
        a('s_mov_b32 s14, 0x8000000'); a('s_mov_b32 s15, 0x20000')
        a(f's_mov_b32 s18, {WS_SIZE}'); a('s_mov_b32 s19, 0x20000')
        a('s_mov_b32 s95, 0')
        a('s_cmp_ge_u32 s3, 8')
        a('s_cbranch_scc1 L_AUX')

    def stream(self):
        a = self.a; L, W = self.L, self.W
        RB = 168 - 4 * L
        SC = RB - 16
        assert SC >= 56
        Q = 52; D = 36; MK = 32; U = 28; ACC = 24; PM = 20
        self.vstamp = 19
        if self.dbg: a('v_mov_b32 v19, 0')
        self.stamp(0)
        a('v_and_b32 v3, 15, v0')
        a('v_lshrrev_b32 v4, 4, v0')
        a('v_lshrrev_b32 v5, 2, v3')
        a('v_and_b32 v6, 3, v0')
        a('v_lshlrev_b32 v1, 8, v5')
        a('v_lshl_add_u32 v1, v6, 6, v1')
        a('v_lshl_add_u32 v1, v4, 4, v1')
        a('v_lshlrev_b32 v2, 4, v0')
        a('s_lshl_b32 s4, s2, 19')
        a('s_lshl_b32 s5, s3, 12')
        a('s_add_u32 s4, s4, s5')
        a('s_waitcnt lgkmcnt(0)')
        slot = lambda p: RB + 4 * (p % L)
        def issue(p):
            isV = p >= 64
            ii = p - 64 if isV else p
            t, j = ii // 4, ii % 4
            if j == 0:
                a(f's_add_u32 s5, s4, {t * 32768}')
            s = slot(p)
            a(f'buffer_load_dwordx4 v[{s}:{s+3}], {"v2" if isV else "v1"}, {"s[12:15]" if isV else "s[8:11]"}, s5 offen offset:{j*1024} nt')
        def setup_rest():
            a('v_mov_b32 v7, 0')
            for j in range(4):
                a(f'v_cmp_eq_u32 vcc, {j}, v6')
                a(f'v_cndmask_b32 v{MK+j}, 0, 1.0, vcc')
            a('v_and_b32 v8, 1, v5')
            a('v_lshlrev_b32 v9, 8, v8')
            a('v_lshl_add_u32 v9, v6, 6, v9')
            a('v_lshl_add_u32 v9, v4, 4, v9')
            a('s_lshl_b32 s6, s3, 2')
            a('v_add_u32 v10, s6, v4')
            a('v_lshl_add_u32 v10, v8, 5, v10')
            a('v_lshlrev_b32 v10, 3, v10')
            a('v_lshlrev_b32 v11, 3, v8')
            a('v_and_b32 v12, 1, v4')
            a('v_lshlrev_b32 v12, 9, v12')
            a('v_lshl_add_u32 v12, v3, 5, v12')
            a('v_lshrrev_b32 v13, 1, v4')
            a('v_lshl_add_u32 v12, v13, 4, v12')
            a('s_lshl_b32 s6, s3, 10')
            a('v_add_u32 v12, s6, v12')
            a('v_lshrrev_b32 v13, 1, v6')
            a('v_lshrrev_b32 v14, 3, v3')
            a('v_lshl_add_u32 v13, v14, 1, v13')
            a('v_and_b32 v14, 1, v0')
            a('v_cmp_eq_u32 vcc, 1, v14')
            a('v_mov_b32 v15, 0xffff')
            a('v_mov_b32 v16, 0xffff0000')
            a('v_cndmask_b32 v15, v15, v16, vcc')
            for j in range(4):
                a(f'v_cmp_eq_u32 vcc, {j}, v13')
                a(f'v_cndmask_b32 v{PM+j}, 0, v15, vcc')
            for r in range(4): a(f'v_mov_b32 v{ACC+r}, 0')
            a('s_mov_b32 s7, 0x3db504f3')
            a(f's_mov_b32 s6, {LOG2E:#x}')
        def consumeK(c):
            for i in range(4):
                s = slot(4 * c + i)
                a(f'v_mfma_f32_16x16x32_bf16 v[{D+4*i}:{D+4*i+3}], v[{s}:{s+3}], v[{Q}:{Q+3}], 0')
            for i in range(4):
                for v in range(4):
                    op = 'v_mul_f32_dpp' if i == 0 else 'v_fmac_f32_dpp'
                    a(f'{op} v{U+v}, v{D+4*i+v}, v{MK+i} quad_perm:[{v},{v},{v},{v}] {DPPALL}')
            a(f'v_add_f32 v{U}, v{U}, v{U+1}')
            a(f'v_add_f32 v{U+2}, v{U+2}, v{U+3}')
            a(f'v_add_f32 v{U}, v{U}, v{U+2}')
            self.R(f'v{U}', f'v{U}')
            a(f'v_mul_f32 v{U}, s7, v{U}')
            self.R(f'v{SC+c}', f'v{U}')
        def stats():
            self.stamp(2)
            s = [f'v{SC+t}' for t in range(16)]
            a(f'v_max3_f32 v14, {s[0]}, {s[1]}, {s[2]}')
            a(f'v_max3_f32 v15, {s[3]}, {s[4]}, {s[5]}')
            a(f'v_max3_f32 v14, v14, {s[6]}, {s[7]}')
            a(f'v_max3_f32 v15, v15, {s[8]}, {s[9]}')
            a(f'v_max3_f32 v14, v14, {s[10]}, {s[11]}')
            a(f'v_max3_f32 v15, v15, {s[12]}, {s[13]}')
            a(f'v_max3_f32 v14, v14, {s[14]}, {s[15]}')
            a('v_max_f32 v14, v14, v15')
            self.dpp_red('v_max_f32', [('v14', None)], ['x1', 'x2'])
            for t in range(16): a(f'v_sub_f32 v{D+t}, {s[t]}, v14')
            for t in range(16): a(f'v_mul_f32 v{D+t}, s6, v{D+t}')
            for t in range(16): a(f'v_exp_f32 v{D+t}, v{D+t}')
            for st in (8, 4, 2, 1):
                for t in range(st): a(f'v_add_f32 v{D+t}, v{D+t}, v{D+t+st}')
            a(f'v_mov_b32 v15, v{D}')
            self.dpp_red('v_add_f32', [('v15', None)], ['x1', 'x2'])
            a('s_mov_b32 exec_lo, 0x00110011')
            a('s_mov_b32 exec_hi, 0x00110011')
            a(f'ds_write_b64 v10, v[14:15] offset:{L_STAT}')
            a('s_mov_b64 exec, 1')
            a('v_mov_b32 v16, 1')
            a('s_waitcnt lgkmcnt(0)')
            a(f'ds_add_u32 v7, v16 offset:{L_CSTAT}')
            a('s_mov_b64 exec, -1')
        def gateQ():
            self.stamp(1)
            self.spin_lds(L_FQ, 1, 'v7', 'v13', code=1)
            a(f'ds_read_b128 v[{Q}:{Q+3}], v9 offset:{L_QL}')
            a('s_waitcnt lgkmcnt(0)')
        def gateS():
            self.stamp(3)
            self.spin_lds(L_FS, 1, 'v7', 'v13', code=2)
            self.stamp(4)
            a(f'ds_read_b64 v[14:15], v11 offset:{L_GSTAT}')
            a('s_waitcnt lgkmcnt(0)')
            s = [f'v{SC+t}' for t in range(16)]
            for t in range(16): a(f'v_sub_f32 {s[t]}, {s[t]}, v14')
            for t in range(16): a(f'v_mul_f32 {s[t]}, s6, {s[t]}')
            for t in range(16): a(f'v_exp_f32 {s[t]}, {s[t]}')
            for t in range(16): a(f'v_mul_f32 {s[t]}, {s[t]}, v15')
            for t in range(16): a(f'v_cvt_pk_bf16_f32 {s[t]}, {s[t]}, {s[t]}')
        def consumeV(c):
            t = c - 16
            for i in range(4):
                for j in range(4):
                    a(f'v_and_b32_dpp v{D+4*i+j}, v{SC+t}, v{PM+j} quad_perm:[{i},{i},{i},{i}] {DPPALL}')
            for i in range(4):
                s = slot(4 * c + i)
                a(f'v_mfma_f32_16x16x32_bf16 v[{ACC}:{ACC+3}], v[{D+4*i}:{D+4*i+3}], v[{s}:{s+3}], v[{ACC}:{ACC+3}]')
        p = 0; c = 0; known = -1; gq = gs = False
        def wait(n):
            nonlocal known
            k = p - n - 1
            if k > known:
                a(f's_waitcnt vmcnt({n})'); known = k
        def gate_ok(cc): return gq if cc < 16 else gs
        def consume():
            nonlocal c
            need = 4 * c + 3
            if need > known: wait(p - need - 1)
            if c < 16: consumeK(c)
            else: consumeV(c)
            c += 1
            if c == 16: stats()
        while not (p == 128 and c == 32):
            can = p < 128 and (p < L or (p - L) // 4 < c)
            if can:
                if p >= W: wait(W - 1)
                issue(p); p += 1
                if p == W:
                    setup_rest()
                    a('s_barrier')
                if c < 32 and gate_ok(c) and known >= 4 * c + 3: consume()
            else:
                if c < 16 and not gq: gateQ(); gq = True
                elif c >= 16 and not gs: gateS(); gs = True
                else: consume()
        self.stamp(5)
        a(f'ds_write_b128 v12, v[{ACC}:{ACC+3}] offset:{L_OP}')
        a('s_mov_b64 exec, 1')
        a('v_mov_b32 v15, 1')
        a('s_waitcnt lgkmcnt(0)')
        a(f'ds_add_rtn_u32 v13, v7, v15 offset:{L_CO}')
        a('s_waitcnt lgkmcnt(0)')
        a('v_readfirstlane_b32 s91, v13')
        a('s_mov_b64 exec, -1')
        a('s_cmp_eq_u32 s91, 7')
        a('s_cbranch_scc0 L_STREAM_END')
        for w in range(8):
            a(f'ds_read_b128 v[{RB+4*w}:{RB+4*w+3}], v2 offset:{L_OP + w*1024}')
        a('s_lshl_b32 s5, s2, 10')
        a(f's_add_u32 s5, s5, {WS_OPART}')
        a('s_waitcnt lgkmcnt(0)')
        for st in (4, 2, 1):
            for w in range(st):
                for r in range(4):
                    a(f'v_add_f32 v{RB+4*w+r}, v{RB+4*w+r}, v{RB+4*(w+st)+r}')
        for r in range(4): a(f'v_or_b32 v{RB+r}, 1, v{RB+r}')
        a(f'buffer_store_dwordx4 v[{RB}:{RB+3}], v2, s[16:19], s5 offen sc1')
        a.label('L_STREAM_END')
        self.stamp(6)
        if self.dbg: a('v_writelane_b32 v19, s95, 14')
        self.stamp_flush('v13')
        a('s_endpgm')

    WB = 56
    def gemv64(self, nl, first_wait=None):
        a = self.a; WB = self.WB
        XV = 26
        for k in range(0, nl, 4):
            if nl - k >= 4:
                a(f'ds_read_b128 v[{XV+k}:{XV+k+3}], v1 offset:{4*k}')
            else:
                a(f'ds_read_b64 v[{XV+k}:{XV+k+1}], v1 offset:{4*k}')
        if first_wait: a(first_wait)
        a('s_waitcnt lgkmcnt(0)')
        for i in range(nl):
            A = 44 + 4 * (i % 2)
            for j in range(4):
                a(f'v_and_b32 v{A+j}, v{XV+i}, v{4+j}')
            c = '0' if i == 0 else 'v[52:55]'
            a(f'v_mfma_f32_16x16x32_bf16 v[52:55], v[{A}:{A+3}], v[{WB+4*i}:{WB+4*i+3}], {c}')

    def part_write(self, part):
        a = self.a
        a('s_mov_b32 exec_lo, 0x00ff00ff')
        a('s_mov_b32 exec_hi, 0xff00ff00')
        a(f'ds_write_b128 v3, v[52:55] offset:{part}')
        a('s_mov_b64 exec, -1')

    def last_arriver(self, cnt, skip):
        a = self.a
        a('s_mov_b64 exec, 1')
        a('v_mov_b32 v22, 1')
        a('s_waitcnt lgkmcnt(0)')
        a(f'ds_add_rtn_u32 v23, v9, v22 offset:{cnt}')
        a('s_waitcnt lgkmcnt(0)')
        a('v_readfirstlane_b32 s91, v23')
        a('s_mov_b64 exec, -1')
        a('s_cmp_eq_u32 s91, 3')
        a(f's_cbranch_scc0 {skip}')

    def part_sum16(self, part):
        a = self.a
        a('s_mov_b64 exec, 0xffff')
        a('v_lshlrev_b32 v22, 4, v0')
        for k in range(8):
            a(f'ds_read_b128 v[{24+4*k}:{27+4*k}], v22 offset:{part + k*PSTR*4}')
        a('s_waitcnt lgkmcnt(0)')
        for st in (4, 2, 1):
            for w in range(st):
                for r in range(4):
                    a(f'v_add_f32 v{24+4*w+r}, v{24+4*w+r}, v{24+4*(w+st)+r}')

    def publish_bf16(self, soff):
        a = self.a
        a('v_cvt_pk_bf16_f32 v24, v24, v25')
        a('v_cvt_pk_bf16_f32 v26, v26, v27')
        a('v_mov_b32 v25, s56')
        a('v_mov_b32 v27, s56')
        a(f'buffer_store_dwordx4 v[24:27], v22, s[16:19], {soff} offen sc1')
        a('s_mov_b64 exec, -1')

    def t_write(self, r0):
        a = self.a
        for k in range(4):
            a(f'v_cvt_pk_bf16_f32 v{r0+k}, v{r0+k}, v{r0+k}')
        for k in range(4):
            a(f'ds_write_b32 v2, v{r0+k} offset:{80*k}')

    def ln_stats(self, y0):
        a = self.a
        a(f'v_add_f32 v22, v{y0}, v{y0+1}')
        for k in range(2, 9): a(f'v_add_f32 v22, v22, v{y0+k}')
        self.dpp_red('v_add_f32', [('v22', 'v23')], ['x1', 'x2', 'hm', 'rm', 'p16', 'p32'])
        a(f'v_mul_f32 v22, {fbits(1/576):#x}, v22')
        for k in range(9): a(f'v_sub_f32 v{y0+k}, v{y0+k}, v22')
        a(f'v_mul_f32 v23, v{y0}, v{y0}')
        for k in range(1, 9): a(f'v_fmac_f32 v23, v{y0+k}, v{y0+k}')
        self.dpp_red('v_add_f32', [('v23', f'v{y0}')], ['x1', 'x2', 'hm', 'rm', 'p16', 'p32'])
        a(f'v_mul_f32 v23, {fbits(1/576):#x}, v23')
        self.R('v22', 'v22')
        self.R('v23', 'v23')
        a(f'v_add_f32 v23, {fbits(1e-5):#x}, v23')
        self.R('v23', 'v23')
        a('v_sqrt_f32 v23, v23')
        self.R('v23', 'v23')
        a('v_rcp_f32 v23, v23')
        a('v_readfirstlane_b32 s92, v22')
        a('v_readfirstlane_b32 s93, v23')

    def unpack4(self, dst, lo, hi):
        a = self.a
        a(f'v_and_b32 v{dst+1}, s94, {lo}')
        a(f'v_and_b32 v{dst+3}, s94, {hi}')
        a(f'v_lshlrev_b32 v{dst}, 16, {lo}')
        a(f'v_lshlrev_b32 v{dst+2}, 16, {hi}')

    def wloads(self, srd, n, stride8, base_s, pol, paced, half=None, start=0, pend=0):
        a = self.a; WB = self.WB
        cnt = pend
        a(f's_mov_b32 s61, {base_s}')
        for i in range(n):
            r = WB + 4 * (start + i)
            if paced and cnt >= self.WA:
                a(f's_waitcnt vmcnt({self.WA - (2 if half else 1)})')
            if half:
                a('s_mov_b64 exec, s[62:63]')
                a(f'buffer_load_dwordx4 v[{r}:{r+3}], v8, {half[0]}, s61 offen {pol}')
                a('s_mov_b64 exec, s[64:65]')
                a(f'buffer_load_dwordx4 v[{r}:{r+3}], v8, {half[1]}, s61 offen {pol}')
                cnt += 2
            else:
                a(f'buffer_load_dwordx4 v[{r}:{r+3}], v8, {srd}, s61 offen {pol}')
                cnt += 1
            if i + 1 < n: a(f's_add_u32 s61, s61, {stride8}')
        if half: a('s_mov_b64 exec, -1')
        return cnt

    def voff64(self, stride, chunkmask=7):
        a = self.a
        a('v_lshrrev_b32 v8, 3, v0')
        a(f'v_mul_u32_u24 v8, {stride}, v8')
        a(f'v_and_b32 v22, {chunkmask}, v0')
        a('v_lshl_add_u32 v8, v22, 4, v8')

    def aux(self):
        a = self.a; WB = self.WB
        a.label('L_AUX')
        self.vstamp = 19
        self.tmp2 = 'v23'
        a('s_setprio 2')
        a('s_load_dwordx2 s[20:21], s[0:1], 24')
        a('s_load_dwordx2 s[24:25], s[0:1], 32')
        a('s_load_dwordx2 s[28:29], s[0:1], 48')
        a('s_load_dwordx2 s[32:33], s[0:1], 56')
        a('s_load_dwordx2 s[36:37], s[0:1], 64')
        a('s_load_dwordx2 s[40:41], s[0:1], 80')
        a('s_load_dwordx2 s[44:45], s[0:1], 0')
        a('s_load_dwordx2 s[48:49], s[0:1], 72')
        a('s_load_dwordx2 s[52:53], s[0:1], 88')
        for (r, sz) in ((22, 4718592), (26, 4718592), (30, 5308416), (34, 5308416), (38, 5308416), (42, 3981312), (46, 1152), (50, 1152), (54, 1152)):
            a(f's_mov_b32 s{r}, {sz}'); a(f's_mov_b32 s{r+1}, 0x20000')
        a('s_sub_u32 s57, s3, 8')
        if self.dbg: a('v_mov_b32 v19, 0')
        a('v_mov_b32 v9, 0')
        a('v_lshlrev_b32 v22, 2, v0')
        a('s_cmp_lg_u32 s57, 0')
        a('s_cbranch_scc1 L_A_NOINIT')
        a('s_mov_b64 exec, 0xffff')
        a('ds_write_b32 v22, v9')
        a('s_mov_b64 exec, -1')
        a.label('L_A_NOINIT')
        a('v_lshrrev_b32 v23, 3, v0')
        a('v_mul_u32_u24 v1, 80, v23')
        a('s_mul_i32 s58, s57, 640')
        a(f's_add_u32 s58, s58, {L_T}')
        a('v_add_u32 v1, s58, v1')
        a('v_and_b32 v23, 1, v0')
        a('v_mul_u32_u24 v2, 320, v23')
        a('v_lshrrev_b32 v23, 1, v0')
        a('v_lshl_add_u32 v2, v23, 2, v2')
        a('v_add_u32 v2, s58, v2')
        a('v_lshrrev_b32 v23, 5, v0')
        a('s_lshl_b32 s58, s57, 1')
        a('v_add_u32 v23, s58, v23')
        a(f'v_mul_u32_u24 v3, {PSTR*4}, v23')
        a('v_and_b32 v23, 7, v0')
        a('v_lshl_add_u32 v3, v23, 5, v3')
        a('v_bfe_u32 v23, v0, 4, 1')
        a('v_lshl_add_u32 v3, v23, 4, v3')
        a('v_and_b32 v23, 1, v0')
        a('v_cmp_eq_u32 vcc, 1, v23')
        a('v_mov_b32 v24, 0xffff')
        a('v_mov_b32 v25, 0xffff0000')
        a('v_cndmask_b32 v24, v24, v25, vcc')
        a('v_bfe_u32 v23, v0, 1, 2')
        for j in range(4):
            a(f'v_cmp_eq_u32 vcc, {j}, v23')
            a(f'v_cndmask_b32 v{4+j}, 0, v24, vcc')
        a('s_mov_b32 s94, 0xffff0000')
        a('s_mov_b32 s62, 0x0f0f0f0f'); a('s_mov_b32 s63, 0x0f0f0f0f')
        a('s_mov_b32 s64, 0xf0f0f0f0'); a('s_mov_b32 s65, 0xf0f0f0f0')
        a('s_mov_b32 s66, -1'); a('s_mov_b32 s67, 0xf')
        a('s_mul_i32 s58, s57, 288')
        a('v_lshlrev_b32 v21, 3, v0')
        a('v_add_u32 v21, s58, v21')
        a('v_lshlrev_b32 v18, 1, v21')
        a('s_lshr_b32 s68, s2, 4')
        a('s_and_b32 s69, s2, 15')
        a('s_waitcnt lgkmcnt(0)')
        a('buffer_load_dword v20, v9, s[16:19], 0 offen sc1')
        a('s_barrier')
        self.stamp(0)
        a('s_cmp_lt_u32 s2, 144'); a('s_cbranch_scc1 L_H_MLP')
        a('s_cmp_lt_u32 s2, 208'); a('s_cbranch_scc1 L_H_Q')
        a('s_cmp_lt_u32 s2, 226'); a('s_cbranch_scc1 L_H_MODA')
        self.getT()
        a('s_branch L_X1')

        a.label('L_H_MLP')
        self.getT()
        a('s_cmp_eq_u32 s57, 0'); a('s_cbranch_scc1 L_X1')
        a('s_branch L_D')

        a.label('L_H_MODA')
        a('s_sub_u32 s60, s2, 208')
        self.mod_unit_head()
        a('s_branch L_X1')

        a.label('L_H_Q')
        self.q_unit()

        a.label('L_X1')
        a('s_cmp_lg_u32 s57, 0'); a('s_cbranch_scc1 L_D')
        a('s_lshl_b32 s58, s68, 10')
        a(f's_add_u32 s58, s58, {WS_QG}')
        a('v_lshlrev_b32 v22, 4, v0')
        self.poll([(24, 'v22', 's58', 0)], ('tag', [1, 3]), None, code=3, tmp='v28', sleep=4)
        a('v_mov_b32 v25, v26')
        a('v_lshlrev_b32 v23, 3, v0')
        a(f'ds_write_b64 v23, v[24:25] offset:{L_QL}')
        a('v_mov_b32 v23, 1')
        a('s_waitcnt lgkmcnt(0)')
        a(f'ds_write_b32 v9, v23 offset:{L_FQ}')
        self.stamp(2)
        for r in range(4): a(f'v_mov_b32 v{24+r}, 0')
        a('s_lshl_b32 s58, s2, 10')
        a(f's_add_u32 s58, s58, {WS_OPART}')
        a('buffer_store_dwordx4 v[24:27], v22, s[16:19], s58 offen sc1')
        a('s_cmp_lt_u32 s2, 144'); a('s_cbranch_scc0 L_Z_NOTMLP')
        a('s_mul_i32 s58, s2, 2304')
        a(f's_add_u32 s58, s58, {WS_DPART}')
        a('buffer_store_dwordx4 v[24:27], v22, s[16:19], s58 offen sc1')
        a('buffer_store_dwordx4 v[24:27], v22, s[16:19], s58 offen offset:1024 sc1')
        a('s_mov_b64 exec, 0xffff')
        a('buffer_store_dwordx4 v[24:27], v22, s[16:19], s58 offen offset:2048 sc1')
        a('s_mov_b64 exec, -1')
        a('s_branch L_Z_DONE')
        a.label('L_Z_NOTMLP')
        self.wo_unit_index('L_Z_DONE')
        self.wo_kg_nb()
        a('s_mul_i32 s58, s70, 2304')
        a('s_lshl_b32 s59, s71, 8')
        a('s_add_u32 s58, s58, s59')
        a(f's_add_u32 s58, s58, {WS_APART}')
        a('s_mov_b64 exec, 0xffff')
        a('buffer_store_dwordx4 v[24:27], v22, s[16:19], s58 offen sc1')
        a('s_mov_b64 exec, -1')
        a.label('L_Z_DONE')
        a('v_mov_b32 v23, s56')
        a('s_lshl_b32 s58, s2, 2')
        a(f's_add_u32 s58, s58, {WS_READY}')
        a('s_waitcnt vmcnt(0)')
        a('s_mov_b64 exec, 1')
        a('buffer_store_dword v23, v9, s[16:19], s58 offen sc1')
        a('s_mov_b64 exec, -1')

        a.label('L_D')
        a('s_cmp_lt_u32 s2, 144'); a('s_cbranch_scc1 L_D_MLP')
        a('s_cmp_lt_u32 s2, 208'); a('s_cbranch_scc1 L_D_WO')
        a('s_cmp_lt_u32 s2, 244'); a('s_cbranch_scc1 L_D_MODR')
        a('s_cmp_lt_u32 s2, 252'); a('s_cbranch_scc1 L_D_WO')
        a('s_branch L_F')
        a.label('L_D_MODR')
        a('s_sub_u32 s60, s2, 190')
        self.mod_unit(L_PART1, L_CH1, True, 'r')
        a('s_branch L_F')
        a.label('L_D_WO')
        self.wo_unit_index(None)
        self.wo_kg_nb()
        self.voff64(1152)
        a('s_lshl_b32 s58, s70, 9')
        a('s_lshl_b32 s59, s57, 7')
        a('s_add_u32 s58, s58, s59')
        a('s_mul_i32 s58, s58, 1152')
        a('s_lshl_b32 s59, s71, 7')
        a('s_add_u32 s58, s58, s59')
        self.wloads('s[24:27]', 16, 8 * 1152, 's58', self.wpol, True)
        a('s_branch L_F')
        a.label('L_D_MLP')
        self.mlp_unit_index()
        self.voff64(9216, 3)
        a('s_mul_i32 s58, s57, %d' % (144 * 9216))
        a('s_lshl_b32 s59, s60, 6')
        a('s_add_u32 s58, s58, s59')
        n = self.wloads(None, 18, 8 * 9216, 's58', self.gupol, True, half=('s[28:31]', 's[32:35]'))
        self.voff64(1152)
        a('s_lshl_b32 s58, s60, 5')
        a('s_lshl_b32 s59, s57, 3')
        a('s_add_u32 s58, s58, s59')
        a('s_mul_i32 s58, s58, 1152')
        self.wloads('s[36:39]', 9, 128, 's58', self.wpol, True, start=18, pend=n)

        a.label('L_F')
        self.stamp(3)
        a('s_cmp_lg_u32 s57, 0'); a('s_cbranch_scc1 L_E')
        self.stats_exchange()

        a.label('L_E')
        a('s_cmp_lt_u32 s2, 144'); a('s_cbranch_scc1 L_E_GO')
        a('s_cmp_lt_u32 s2, 208'); a('s_cbranch_scc1 L_E_GO')
        a('s_cmp_lt_u32 s2, 244'); a('s_cbranch_scc1 L_AUX_END')
        a('s_cmp_lt_u32 s2, 252'); a('s_cbranch_scc0 L_AUX_END')
        a.label('L_E_GO')
        a('v_lshlrev_b32 v22, 4, v0')
        a(f's_mov_b32 s58, {WS_READY}')
        self.poll([(24, 'v22', 's58', 0)], ('tag', [0, 1, 2, 3]), None, code=5, tmp='v28', sleep=8)
        a('s_cmp_lt_u32 s2, 144'); a('s_cbranch_scc0 L_G_WO')
        self.mlp_tail()
        a('s_branch L_AUX_END')
        a.label('L_G_WO')
        self.wo_tail()
        a.label('L_AUX_END')
        self.stamp(15)
        if self.dbg:
            a('v_writelane_b32 v19, s95, 14')
        self.stamp_flush('v13')
        a.label('L_END')
        a('s_endpgm')

    def getT(self):
        a = self.a
        a('s_waitcnt vmcnt(0)')
        a('v_readfirstlane_b32 s56, v20')
        a('s_mul_i32 s56, s56, 1664525')
        a('s_add_u32 s56, s56, 1013904223')

    def mod_unit_head(self):
        a = self.a
        a('s_mov_b64 exec, s[66:67]')
        a('buffer_load_dwordx2 v[24:25], v21, s[48:51], 0 offen')
        a('s_mov_b64 exec, -1')
        self.voff64(6912)
        a('s_mul_i32 s59, s57, %d' % (144 * 6912))
        a('s_lshl_b32 s58, s60, 7')
        a('s_add_u32 s59, s59, s58')
        self.wloads('s[40:43]', 18, 8 * 6912, 's59', self.wpol, False)
        a('s_waitcnt vmcnt(18)')
        a('v_readfirstlane_b32 s56, v20')
        a('s_mul_i32 s56, s56, 1664525')
        a('s_add_u32 s56, s56, 1013904223')
        self.silu_T()
        self.dump(0, 28)
        self.gemv64(18, 's_waitcnt vmcnt(0)')
        a('s_nop 7')
        self.dump(1, 52)
        self.part_write(L_PART0)
        skip = a.newlabel('MODSKIP')
        self.last_arriver(L_CH0, skip)
        self.part_sum16(L_PART0)
        a('s_lshl_b32 s58, s60, 8')
        a(f's_add_u32 s58, s58, {WS_MODG}')
        self.publish_bf16('s58')
        a.label(skip)
        self.stamp(1)

    def silu_T(self):
        a = self.a
        a('s_mov_b64 exec, s[66:67]')
        self.unpack4(28, 'v24', 'v25')
        for k in range(4): a(f'v_mul_f32 v{32+k}, {(0xbfb8aa3b):#x}, v{28+k}')
        for k in range(4): a(f'v_exp_f32 v{32+k}, v{32+k}')
        for k in range(4): a(f'v_add_f32 v{32+k}, 1.0, v{32+k}')
        for k in range(4): a(f'v_rcp_f32 v{32+k}, v{32+k}')
        for k in range(4): a(f'v_mul_f32 v{28+k}, v{28+k}, v{32+k}')
        self.t_write(28)
        a('s_mov_b64 exec, -1')

    def mod_unit(self, part, cnt, paced, tag):
        a = self.a
        a('s_mov_b64 exec, s[66:67]')
        a('buffer_load_dwordx2 v[24:25], v21, s[48:51], 0 offen')
        a('s_mov_b64 exec, -1')
        self.voff64(6912)
        a('s_mul_i32 s59, s57, %d' % (144 * 6912))
        a('s_lshl_b32 s58, s60, 7')
        a('s_add_u32 s59, s59, s58')
        self.wloads('s[40:43]', 18, 8 * 6912, 's59', self.wpol, True, pend=1)
        self.silu_T()
        self.gemv64(18, 's_waitcnt vmcnt(0)')
        self.part_write(part)
        skip = a.newlabel('MODSKIP')
        self.last_arriver(cnt, skip)
        self.part_sum16(part)
        a('s_lshl_b32 s58, s60, 8')
        a(f's_add_u32 s58, s58, {WS_MODG}')
        self.publish_bf16('s58')
        a.label(skip)

    def q_unit(self):
        a = self.a
        a('s_sub_u32 s60, s2, 144')
        a('s_mov_b64 exec, s[66:67]')
        a('buffer_load_dwordx2 v[24:25], v21, s[44:47], 0 offen')
        a('s_mov_b64 exec, -1')
        a('v_lshlrev_b32 v22, 1, v0')
        for k in range(9):
            a(f'buffer_load_ushort v{28+k}, v22, s[44:47], 0 offen offset:{128*k}')
        self.voff64(8192)
        a('s_mul_i32 s59, s57, %d' % (144 * 8192))
        a('s_lshl_b32 s58, s60, 7')
        a('s_add_u32 s59, s59, s58')
        self.wloads('s[20:23]', 18, 8 * 8192, 's59', self.wpol, False)
        a('s_waitcnt vmcnt(18)')
        a('v_readfirstlane_b32 s56, v20')
        a('s_mul_i32 s56, s56, 1664525')
        a('s_add_u32 s56, s56, 1013904223')
        for k in range(9): a(f'v_lshlrev_b32 v{28+k}, 16, v{28+k}')
        self.ln_stats(28)
        self.unpack4(10, 'v24', 'v25')
        for k in range(4): a(f'v_subrev_f32 v{10+k}, s92, v{10+k}')
        for k in range(4): self.R(f'v{10+k}', f'v{10+k}')
        for k in range(4): a(f'v_mul_f32 v{10+k}, s93, v{10+k}')
        for k in range(4): self.R(f'v{10+k}', f'v{10+k}')
        a('s_mov_b64 exec, s[66:67]')
        a(f's_mov_b32 s58, {WS_MODG}')
        self.poll([(24, 'v18', 's58', 0), (28, 'v18', 's58', 2304)], ('tag', [1, 3]), 's[66:67]', code=4, tmp='v32', sleep=2)
        self.stamp(1)
        self.unpack4(32, 'v24', 'v26')
        self.unpack4(36, 'v28', 'v30')
        for k in range(4): a(f'v_add_f32 v{36+k}, 1.0, v{36+k}')
        for k in range(4): self.R(f'v{36+k}', f'v{36+k}')
        for k in range(4): a(f'v_mul_f32 v{36+k}, v{36+k}, v{10+k}')
        for k in range(4): self.R(f'v{36+k}', f'v{36+k}')
        for k in range(4): a(f'v_add_f32 v{36+k}, v{36+k}, v{32+k}')
        self.t_write(36)
        a('s_mov_b64 exec, -1')
        self.gemv64(18)
        self.part_write(L_PART0)
        skip = a.newlabel('QSKIP')
        self.last_arriver(L_CH0, skip)
        self.part_sum16(L_PART0)
        a('s_lshl_b32 s58, s60, 8')
        a(f's_add_u32 s58, s58, {WS_QG}')
        self.publish_bf16('s58')
        a.label(skip)

    def wo_unit_index(self, none_label):
        a = self.a
        l1 = a.newlabel('WOI'); l2 = a.newlabel('WOI')
        a('s_sub_u32 s60, s2, 144')
        a(f's_cmp_lt_u32 s2, 208'); a(f's_cbranch_scc1 {l2}')
        if none_label:
            a('s_cmp_lt_u32 s2, 244'); a(f's_cbranch_scc1 {none_label}')
            a('s_cmp_lt_u32 s2, 252'); a(f's_cbranch_scc0 {none_label}')
        a('s_sub_u32 s60, s2, 180')
        a.label(l2)

    def wo_kg_nb(self):
        a = self.a
        a('s_mul_i32 s70, s60, 57')
        a('s_lshr_b32 s70, s70, 9')
        a('s_mul_i32 s71, s70, 9')
        a('s_sub_u32 s71, s60, s71')

    def mlp_unit_index(self):
        a = self.a
        a('s_and_b32 s60, s2, 0xf0')
        a('s_and_b32 s58, s2, 7')
        a('s_lshl_b32 s58, s58, 1')
        a('s_add_u32 s60, s60, s58')
        a('s_bfe_u32 s58, s2, 0x10003')
        a('s_add_u32 s60, s60, s58')

    def stats_exchange(self):
        a = self.a
        self.spin_lds(L_CSTAT, 8, 'v9', 'v22', code=6)
        self.stamp(4)
        a('v_lshlrev_b32 v22, 3, v0')
        a(f'ds_read_b64 v[24:25], v22 offset:{L_STAT}')
        a('s_waitcnt lgkmcnt(0)')
        a('v_mov_b32 v26, v24')
        self.dpp_red('v_max_f32', [('v26', 'v27')], ['x1', 'x2', 'hm', 'rm', 'p16'])
        a('v_sub_f32 v24, v24, v26')
        a(f'v_mul_f32 v24, {LOG2E:#x}, v24')
        a('v_exp_f32 v24, v24')
        a('v_mul_f32 v25, v25, v24')
        self.dpp_red('v_add_f32', [('v25', 'v27')], ['x1', 'x2', 'hm', 'rm', 'p16'])
        a('v_mov_b32 v24, v26')
        a('v_mov_b32 v26, 0')
        a('v_mov_b32 v27, s56')
        a('v_lshrrev_b32 v22, 5, v0')
        a('v_lshlrev_b32 v22, 8, v22')
        a('s_lshl_b32 s58, s68, 9')
        a(f's_add_u32 s58, s58, {WS_STATS}')
        a('s_lshl_b32 s59, s69, 4')
        a('s_add_u32 s59, s59, s58')
        a('s_mov_b32 exec_lo, 1'); a('s_mov_b32 exec_hi, 1')
        a('buffer_store_dwordx4 v[24:27], v22, s[16:19], s59 offen sc1')
        a('s_mov_b64 exec, -1')
        a('v_and_b32 v22, 31, v0')
        a('v_lshlrev_b32 v22, 4, v22')
        self.poll([(28, 'v22', 's58', 0)], ('tag', [3]), None, code=7, tmp='v32', sleep=2)
        a('v_mov_b32 v26, v28')
        self.dpp_red('v_max_f32', [('v26', None)], ['x1', 'x2', 'hm', 'rm'])
        a('v_sub_f32 v28, v28, v26')
        a(f'v_mul_f32 v28, {LOG2E:#x}, v28')
        a('v_exp_f32 v28, v28')
        a('v_mul_f32 v27, v29, v28')
        self.dpp_red('v_add_f32', [('v27', None)], ['x1', 'x2', 'hm', 'rm'])
        a('v_rcp_f32 v27, v27')
        a('v_lshrrev_b32 v22, 4, v0')
        a('v_lshlrev_b32 v22, 3, v22')
        a('s_mov_b32 exec_lo, 0x00010001'); a('s_mov_b32 exec_hi, 0')
        a(f'ds_write_b64 v22, v[26:27] offset:{L_GSTAT}')
        a('s_mov_b64 exec, -1')
        a('v_mov_b32 v23, 1')
        a('s_waitcnt lgkmcnt(0)')
        a(f'ds_write_b32 v9, v23 offset:{L_FS}')
        self.stamp(5)

    def wo_tail(self):
        a = self.a; WB = self.WB
        G = WB + 64
        self.wo_unit_index(None)
        self.wo_kg_nb()
        a('s_lshl_b32 s58, s70, 1')
        a('s_lshr_b32 s59, s57, 1')
        a('s_add_u32 s58, s58, s59')
        a('s_lshl_b32 s58, s58, 14')
        a('s_and_b32 s59, s57, 1')
        a('s_lshl_b32 s59, s59, 9')
        a('s_add_u32 s58, s58, s59')
        a(f's_add_u32 s58, s58, {WS_OPART}')
        a('v_lshrrev_b32 v22, 5, v0')
        a('v_lshlrev_b32 v22, 10, v22')
        a('v_and_b32 v23, 31, v0')
        a('v_lshl_add_u32 v22, v23, 4, v22')
        a('s_add_u32 s59, s58, 4096'); a('s_add_u32 s72, s58, 8192'); a('s_add_u32 s73, s58, 12288')
        so = ['s58', 's59', 's72', 's73']
        loads = [(G + 4 * i, 'v22', so[i // 2], (i % 2) * 2048) for i in range(8)]
        self.spin_lds(L_CO, 8, 'v9', 'v24', code=12, sleep=2)
        self.poll(loads, ('nz',), None, code=8, tmp='v24', sleep=1, maxit=8000)
        self.stamp(6)
        for st in (4, 2, 1):
            for w in range(st):
                for r in range(4):
                    a(f'v_add_f32 v{G+4*w+r}, v{G+4*w+r}, v{G+4*(w+st)+r}')
        self.dpp_red('v_add_f32', [(f'v{G+r}', f'v{G+4+r}') for r in range(4)], ['p32'])
        a('s_mov_b32 exec_lo, -1'); a('s_mov_b32 exec_hi, 0')
        self.t_write(G)
        a('s_mov_b64 exec, -1')
        self.gemv64(16)
        self.part_write(L_PART2)
        skip = a.newlabel('WOSKIP')
        self.last_arriver(L_CH2, skip)
        self.part_sum16(L_PART2)
        for r in range(4): a(f'v_or_b32 v{24+r}, 1, v{24+r}')
        a('s_mul_i32 s58, s70, 2304')
        a('s_lshl_b32 s59, s71, 8')
        a('s_add_u32 s58, s58, s59')
        a(f's_add_u32 s58, s58, {WS_APART}')
        a('buffer_store_dwordx4 v[24:27], v22, s[16:19], s58 offen sc1')
        a('s_mov_b64 exec, -1')
        a.label(skip)
        self.stamp(7)

    def mlp_tail(self):
        a = self.a; WB = self.WB
        CB = 164
        a('s_mov_b64 exec, s[66:67]')
        a('buffer_load_dwordx2 v[44:45], v21, s[44:47], 0 offen')
        a(f's_mov_b32 s58, {WS_MODG + 2*2304}')
        self.poll([(24, 'v18', 's58', 0), (28, 'v18', 's58', 2304)], ('tag', [1, 3]), 's[66:67]', code=9, tmp='v40', sleep=8)
        self.unpack4(14, 'v24', 'v26')
        self.unpack4(48, 'v28', 'v30')
        a(f's_mov_b32 s58, {WS_MODG + 4*2304}')
        self.poll([(24, 'v18', 's58', 0), (28, 'v18', 's58', 2304)], ('tag', [1, 3]), 's[66:67]', code=9, tmp='v40', sleep=8)
        self.unpack4(CB, 'v24', 'v26')
        for k in range(4): a(f'v_add_f32 v{CB+k}, 1.0, v{CB+k}')
        for k in range(4): self.R(f'v{CB+k}', f'v{CB+k}')
        self.unpack4(32, 'v28', 'v30')
        a(f'ds_write_b128 v18, v[32:35] offset:{L_GB}')
        self.unpack4(10, 'v44', 'v45')
        a('v_cvt_pk_bf16_f32 v20, v48, v49')
        a('v_cvt_pk_bf16_f32 v21, v50, v51')
        self.stamp(6)
        so = []
        a(f's_mov_b32 s58, {WS_APART}')
        a(f's_mov_b32 s59, {WS_APART + 2*2304}')
        a(f's_mov_b32 s72, {WS_APART + 4*2304}')
        a(f's_mov_b32 s73, {WS_APART + 6*2304}')
        so = ['s58', 's59', 's72', 's73']
        loads = [(24 + 4 * i, 'v18', so[i // 2], (i % 2) * 2304) for i in range(8)]
        self.spin_lds(L_CO, 8, 'v9', 'v22', code=12, sleep=2)
        self.poll(loads, ('nz',), 's[66:67]', code=10, tmp='v22', sleep=1, maxit=8000)
        self.stamp(7)
        for st in (4, 2, 1):
            for w in range(st):
                for r in range(4):
                    a(f'v_add_f32 v{24+4*w+r}, v{24+4*w+r}, v{24+4*(w+st)+r}')
        for k in range(4): self.R(f'v{24+k}', f'v{24+k}')
        for k in range(4): a(f'v_mul_f32 v{24+k}, v{14+k}, v{24+k}')
        for k in range(4): self.R(f'v{24+k}', f'v{24+k}')
        for k in range(4): a(f'v_add_f32 v{10+k}, v{10+k}, v{24+k}')
        for k in range(4): self.R(f'v{10+k}', f'v{10+k}')
        a(f'ds_write_b128 v18, v[10:13] offset:{L_X2}')
        a('s_mov_b64 exec, -1')
        a('s_waitcnt lgkmcnt(0)')
        a('s_barrier')
        a('v_lshlrev_b32 v22, 2, v0')
        for k in range(4):
            a(f'ds_read2st64_b32 v[{28+2*k}:{29+2*k}], v22 offset0:{L_X2//256 + 2*k} offset1:{L_X2//256 + 2*k+1}' if L_X2 % 256 == 0 else '; bad')
        a(f'ds_read_b32 v36, v22 offset:{L_X2 + 2048}')
        a('s_waitcnt lgkmcnt(0)')
        self.ln_stats(28)
        a('s_mov_b64 exec, s[66:67]')
        for k in range(4): a(f'v_subrev_f32 v{24+k}, s92, v{10+k}')
        for k in range(4): self.R(f'v{24+k}', f'v{24+k}')
        for k in range(4): a(f'v_mul_f32 v{24+k}, s93, v{24+k}')
        for k in range(4): self.R(f'v{24+k}', f'v{24+k}')
        for k in range(4): a(f'v_mul_f32 v{24+k}, v{24+k}, v{CB+k}')
        for k in range(4): self.R(f'v{24+k}', f'v{24+k}')
        self.unpack4(28, 'v20', 'v21')
        for k in range(4): a(f'v_add_f32 v{24+k}, v{24+k}, v{28+k}')
        self.t_write(24)
        a('s_mov_b64 exec, -1')
        self.gemv64(18)
        self.part_write(L_PART2)
        a('s_waitcnt lgkmcnt(0)')
        a('s_barrier')
        self.stamp(8)
        a('v_and_b32 v22, 7, v0')
        a(f'v_mul_u32_u24 v22, {PSTR*4}, v22')
        a('v_lshrrev_b32 v23, 3, v0')
        a('v_lshl_add_u32 v22, v23, 2, v22')
        a('s_lshl_b32 s58, s57, 5')
        a(f's_add_u32 s58, s58, {L_PART2}')
        a('v_add_u32 v22, s58, v22')
        a('ds_read2_b32 v[24:25], v22 offset0:0 offset1:32')
        a('s_waitcnt lgkmcnt(0)')
        self.dpp_red('v_add_f32', [('v24', None), ('v25', None)], ['x1', 'x2', 'hm'])
        self.R('v24', 'v24'); self.R('v25', 'v25')
        c1 = 2 * 0.7978845608028654; c2 = c1 * 0.044715
        a('v_mul_f32 v26, v24, v24')
        a(f'v_mov_b32 v27, {fbits(-c1 * 1.4426950408889634):#x}')
        a(f'v_fmac_f32 v27, {fbits(-c2 * 1.4426950408889634):#x}, v26')
        a('v_mul_f32 v26, v24, v27')
        a('v_exp_f32 v26, v26')
        a('v_add_f32 v26, 1.0, v26')
        a('v_rcp_f32 v26, v26')
        a('v_mul_f32 v24, v24, v26')
        self.R('v24', 'v24')
        a('v_mul_f32 v24, v24, v25')
        a('v_cvt_pk_bf16_f32 v24, v24, v24')
        for j in range(4): a(f'v_and_b32 v{44+j}, v24, v{4+j}')
        for nb in range(9):
            a(f'v_mfma_f32_16x16x32_bf16 v[{WB+4*nb}:{WB+4*nb+3}], v[44:47], v[{WB+72+4*nb}:{WB+72+4*nb+3}], 0')
        a('v_lshrrev_b32 v23, 5, v0')
        a('s_lshl_b32 s58, s57, 1')
        a('v_add_u32 v23, s58, v23')
        a('v_mul_u32_u24 v22, 2304, v23')
        a('v_and_b32 v23, 7, v0')
        a('v_lshl_add_u32 v22, v23, 5, v22')
        a('v_bfe_u32 v23, v0, 4, 1')
        a('v_lshl_add_u32 v22, v23, 4, v22')
        a('s_mov_b32 exec_lo, 0x00ff00ff')
        a('s_mov_b32 exec_hi, 0xff00ff00')
        for nb in range(9):
            a(f'ds_write_b128 v22, v[{WB+4*nb}:{WB+4*nb+3}] offset:{L_DP + nb*256}')
        a('s_mov_b64 exec, -1')
        a('s_waitcnt lgkmcnt(0)')
        a('s_barrier')
        a('s_mov_b64 exec, s[66:67]')
        for k in range(8):
            a(f'ds_read_b128 v[{24+4*k}:{27+4*k}], v18 offset:{L_DP + k*2304}')
        a('s_mul_i32 s58, s2, 2304')
        a(f's_add_u32 s58, s58, {WS_DPART}')
        a('s_waitcnt lgkmcnt(0)')
        for st in (4, 2, 1):
            for w in range(st):
                for r in range(4):
                    a(f'v_add_f32 v{24+4*w+r}, v{24+4*w+r}, v{24+4*(w+st)+r}')
        for r in range(4): a(f'v_or_b32 v{24+r}, 1, v{24+r}')
        a('buffer_store_dwordx4 v[24:27], v18, s[16:19], s58 offen sc1')
        a('s_mov_b64 exec, -1')
        self.stamp(9)
        a('s_cmp_lt_u32 s2, 36'); a('s_cbranch_scc0 L_AUX_END')
        a('s_cmp_lg_u32 s57, 0'); a('s_cbranch_scc1 L_AUX_END')
        a('v_lshrrev_b32 v22, 2, v0')
        a('v_mul_u32_u24 v22, 2304, v22')
        a('v_and_b32 v23, 3, v0')
        a('v_lshl_add_u32 v22, v23, 4, v22')
        a('s_lshl_b32 s58, s2, 6')
        a(f's_add_u32 s58, s58, {WS_DPART}')
        sregs = [f's{72+i}' for i in range(9)]
        for i in range(9): a(f's_add_u32 {sregs[i]}, s58, {i*16*2304}')
        a('s_lshl_b32 s59, s2, 6')
        a('v_lshlrev_b32 v21, 4, v23')
        a('v_add_u32 v21, s59, v21')
        a(f'ds_read_b128 v[10:13], v21 offset:{L_X2}')
        a(f'ds_read_b128 v[14:17], v21 offset:{L_GB}')
        loads = [(WB + 4 * i, 'v22', sregs[i], 0) for i in range(9)]
        self.poll(loads, ('nz',), None, code=11, tmp='v24', sleep=1, maxit=8000)
        self.stamp(10)
        for i in range(1, 9):
            for r in range(4):
                a(f'v_add_f32 v{WB+r}, v{WB+r}, v{WB+4*i+r}')
        self.dpp_red('v_add_f32', [(f'v{WB+r}', f'v{WB+4+r}') for r in range(4)], ['ror4', 'ror8', 'p16', 'p32'])
        a('s_waitcnt lgkmcnt(0)')
        for r in range(4): self.R(f'v{WB+r}', f'v{WB+r}')
        for r in range(4): a(f'v_mul_f32 v{WB+r}, v{14+r}, v{WB+r}')
        for r in range(4): self.R(f'v{WB+r}', f'v{WB+r}')
        for r in range(4): a(f'v_add_f32 v{WB+r}, v{10+r}, v{WB+r}')
        a(f'v_cvt_pk_bf16_f32 v24, v{WB}, v{WB+1}')
        a(f'v_cvt_pk_bf16_f32 v25, v{WB+2}, v{WB+3}')
        a('v_lshrrev_b32 v21, 1, v21')
        a('s_mov_b64 exec, 0xf')
        a('buffer_store_dwordx2 v[24:25], v21, s[52:55], 0 offen')
        a('s_cmp_lg_u32 s2, 0'); a('s_cbranch_scc1 L_F_NOEP')
        a('s_mov_b64 exec, 1')
        a('v_mov_b32 v23, s56')
        a('buffer_store_dword v23, v9, s[16:19], 0 offen sc1')
        a.label('L_F_NOEP')
        a('s_mov_b64 exec, -1')

    def build(self):
        self.prologue()
        self.stream()
        self.aux()
        hdr = []
        ref = open('cdna_kernels/' + NAME + '.s.ref').read().split('\n')
        for ln in ref:
            if ln.startswith('; @launch'): break
            hdr.append(ln)
        hdr.append(f'; @launch grid=(256,1,1) block=(768,1,1) lds={LDS_SIZE}')
        hdr += ['.amdgcn_target "amdgcn-amd-amdhsa--gfx950"', '.text', f'.globl {NAME}_kernel', '.p2align 8',
                f'.type {NAME}_kernel,@function', f'{NAME}_kernel:']
        tail = ['.section .rodata,"a"', '.p2align 6', f'.amdhsa_kernel {NAME}_kernel',
                '  .amdhsa_next_free_vgpr 168', '  .amdhsa_next_free_sgpr 102', '  .amdhsa_accum_offset 168',
                '  .amdhsa_group_segment_fixed_size 0', '  .amdhsa_kernarg_size 112', '  .amdhsa_user_sgpr_count 2',
                '  .amdhsa_user_sgpr_kernarg_segment_ptr 1', '  .amdhsa_system_sgpr_workgroup_id_x 1', '.end_amdhsa_kernel']
        return '\n'.join(hdr) + '\n' + self.a.text() + '\n'.join(tail) + '\n'

if __name__ == '__main__':
    ap = argparse.ArgumentParser()
    ap.add_argument('-o', default='cdna_kernels/' + NAME + '.s')
    ap.add_argument('--L', type=int, default=24)
    ap.add_argument('--W', type=int, default=4)
    ap.add_argument('--WA', type=int, default=6)
    ap.add_argument('--dbg', action='store_true')
    ap.add_argument('--wpol', default='nt')
    ap.add_argument('--gupol', default='nt')
    args = ap.parse_args()
    g = Gen(L=args.L, W=args.W, WA=args.WA, dbg=args.dbg, wpol=args.wpol, gupol=args.gupol)
    src = g.build()
    open(args.o, 'w').write(src)
    print('wrote', args.o, len(src), 'bytes; nops inserted', g.a.nops)
```

```python
import sys, os, argparse
sys.path.insert(0, os.path.dirname(os.path.abspath(__file__)))
from asmlib import Asm

NAME = 'adaLN_cond__gqa_block_cached__geglu_ffn__decode'

WS_EPOCH = 0x0
WS_MODG  = 0x1000
WS_QG    = 0x8000
WS_STATS = 0xC000
WS_READY = 0xE000
WS_OPART = 0x10000
WS_APART = 0x50000
WS_DPART = 0x60000
WS_DBG   = 0xC0000
WS_DUMP  = 0x100000
WS_SIZE  = 0x800000

L_FQ, L_FS, L_CSTAT, L_CO, L_CH0, L_CH1, L_CH2, L_FH, L_CRF = 0, 4, 8, 12, 16, 20, 24, 28, 32
L_GSTAT = 0x40
L_QL    = 0x100
L_STAT  = 0x400
L_OP    = 0x800
L_T     = 0x2800
L_PART0 = 0x3200
L_PART1 = 0x3B00
L_PART2 = 0x4400
L_X2    = 0x4D00
L_GB    = 0x5600
L_DP    = 0x5F00
LDS_SIZE = 0xA700
PSTR = 72

LOG2E = 0x3fb8aa3b
def fbits(x):
    import struct
    return struct.unpack('<I', struct.pack('<f', x))[0]

DPPALL = 'row_mask:0xf bank_mask:0xf'

class Gen:
    def __init__(self, L=24, W=4, WA=6, dbg=False, wpol='nt', gupol='nt', exp='', PG=16):
        self.PG = PG
        self.exp = exp.split(',')
        self.a = Asm()
        self.L, self.W, self.WA, self.dbg = L, W, WA, dbg
        self.wpol, self.gupol = wpol, gupol

    def R(self, dst, src):
        self.a(f'v_cvt_pk_bf16_f32 {dst}, 0, {src}')

    def dpp_red(self, op, regs, steps):
        a = self.a
        for st in steps:
            if st in ('x1', 'x2', 'hm', 'rm', 'ror4', 'ror8'):
                m = {'x1': 'quad_perm:[1,0,3,2]', 'x2': 'quad_perm:[2,3,0,1]', 'hm': 'row_half_mirror',
                     'rm': 'row_mirror', 'ror4': 'row_ror:4', 'ror8': 'row_ror:8'}[st]
                for (r, t) in regs:
                    a(f'{op}_dpp {r}, {r}, {r} {m} {DPPALL}')
            else:
                ins = {'p16': 'v_permlane16_swap_b32', 'p32': 'v_permlane32_swap_b32'}[st]
                for (r, t) in regs:
                    a(f'v_mov_b32 {t}, {r}')
                for (r, t) in regs:
                    a(f'{ins} {r}, {t}')
                for (r, t) in regs:
                    a(f'{op} {r}, {r}, {t}')

    def stamp(self, idx):
        if not self.dbg: return
        a = self.a
        a('s_memrealtime s[96:97]')
        a('s_waitcnt lgkmcnt(0)')
        a(f'v_writelane_b32 v{self.vstamp}, s96, {idx}')

    def stamp_flush(self, vt):
        if not self.dbg: return
        a = self.a
        a('s_mul_i32 s96, s2, 12')
        a('s_add_u32 s96, s96, s3')
        a('s_lshl_b32 s96, s96, 6')
        a(f's_add_u32 s96, s96, {WS_DBG}')
        a(f'v_lshlrev_b32 {vt}, 2, v0')
        a('s_mov_b64 exec, 0xffff')
        a(f'buffer_store_dword v{self.vstamp}, {vt}, s[16:19], s96 offen')
        a('s_mov_b64 exec, -1')

    def dump(self, slot, r0, vt='v23'):
        if not self.dbg: return
        a = self.a
        a('s_lshl_b32 s96, s2, 2')
        a('s_add_u32 s96, s96, s57')
        a('s_lshl_b32 s96, s96, 10')
        a(f's_add_u32 s96, s96, {WS_DUMP + slot * 1048576}')
        a(f'v_lshlrev_b32 {vt}, 4, v0')
        a(f'buffer_store_dwordx4 v[{r0}:{r0+3}], {vt}, s[16:19], s96 offen')
        a('s_waitcnt vmcnt(0)')

    def spin_lds(self, off, val, vz, vt, maxit=40000, sleep=1, code=0):
        a = self.a
        lp = a.newlabel('SP'); out = a.newlabel('SPO')
        a(f's_mov_b32 s90, {maxit}')
        a.label(lp)
        a(f'ds_read_b32 {vt}, {vz} offset:{off}')
        a('s_waitcnt lgkmcnt(0)')
        a(f'v_readfirstlane_b32 s91, {vt}')
        a(f's_cmp_eq_u32 s91, {val}')
        a(f's_cbranch_scc1 {out}')
        a(f's_sleep {sleep}')
        a('s_sub_u32 s90, s90, 1')
        a(f's_cbranch_scc0 {lp}')
        a(f's_or_b32 s95, s95, {1 << code}')
        a.label(out)

    def poll(self, loads, check, execm, maxit=4000, sleep=2, code=0, tmp=None, tag='s56'):
        a = self.a
        lp = a.newlabel('PL'); out = a.newlabel('PLO')
        a(f's_mov_b32 s90, {maxit}')
        a.label(lp)
        for (d, vo, so, imm) in loads:
            a(f'buffer_load_dwordx4 v[{d}:{d+3}], {vo}, s[16:19], {so} offen offset:{imm} sc1')
        a('s_waitcnt vmcnt(0)')
        if check[0] == 'tag':
            regs = [d + k for (d, _, _, _) in loads for k in check[1]]
            a(f'v_xor_b32 {tmp}, {tag}, v{regs[0]}')
            for r in regs[1:]:
                a(f'v_xor_b32 {self.tmp2}, {tag}, v{r}')
                a(f'v_or_b32 {tmp}, {tmp}, {self.tmp2}')
            a(f'v_cmp_eq_u32 vcc, 0, {tmp}')
        else:
            regs = [d + k for (d, _, _, _) in loads for k in range(4)]
            a(f'v_min_u32 {tmp}, v{regs[0]}, v{regs[1]}')
            i = 2
            while i < len(regs):
                a(f'v_min3_u32 {tmp}, {tmp}, v{regs[i]}, v{regs[i+1]}')
                i += 2
            a(f'v_cmp_ne_u32 vcc, 0, {tmp}')
        a(f's_cmp_eq_u64 vcc, {execm if execm else "-1"}')
        a(f's_cbranch_scc1 {out}')
        a(f's_sleep {sleep}')
        a('s_sub_u32 s90, s90, 1')
        a(f's_cbranch_scc0 {lp}')
        a(f's_or_b32 s95, s95, {1 << code}')
        a.label(out)

    def prologue(self):
        a = self.a
        a('s_cmp_ge_u32 s2, 256')
        a('s_cbranch_scc1 L_END')
        a('s_load_dwordx2 s[8:9], s[0:1], 8')
        a('s_load_dwordx2 s[12:13], s[0:1], 16')
        a('s_load_dwordx2 s[16:17], s[0:1], 104')
        a('v_lshrrev_b32 v1, 6, v0')
        a('v_and_b32 v0, 63, v0')
        a('v_readfirstlane_b32 s3, v1')
        a('s_mov_b32 s10, 0x8000000'); a('s_mov_b32 s11, 0x20000')
        a('s_mov_b32 s14, 0x8000000'); a('s_mov_b32 s15, 0x20000')
        a(f's_mov_b32 s18, {WS_SIZE}'); a('s_mov_b32 s19, 0x20000')
        a('s_mov_b32 s95, 0')
        a('s_cmp_ge_u32 s3, 8')
        a('s_cbranch_scc1 L_AUX')

    def stream(self):
        a = self.a; L, W = self.L, self.W
        RB = 168 - 4 * L
        SC = RB - 16
        assert SC >= 56
        Q = 52; D = 36; MK = 32; U = 28; ACC = 24; PM = 20
        self.vstamp = 19
        if self.dbg: a('v_mov_b32 v19, 0')
        self.stamp(0)
        a('v_and_b32 v3, 15, v0')
        a('v_lshrrev_b32 v4, 4, v0')
        a('v_lshrrev_b32 v5, 2, v3')
        a('v_and_b32 v6, 3, v0')
        a('v_lshlrev_b32 v1, 8, v5')
        a('v_lshl_add_u32 v1, v6, 6, v1')
        a('v_lshl_add_u32 v1, v4, 4, v1')
        a('v_lshlrev_b32 v2, 4, v0')
        a('s_lshl_b32 s4, s2, 19')
        a('s_lshl_b32 s5, s3, 12')
        a('s_add_u32 s4, s4, s5')
        a('v_mov_b32 v7, 0')
        a('s_waitcnt lgkmcnt(0)')
        self.tmp2 = 'v17'
        slot = lambda p: RB + 4 * (p % L)
        def issue(p):
            isV = p >= 64
            ii = p - 64 if isV else p
            t, j = ii // 4, ii % 4
            if j == 0:
                a(f's_add_u32 s5, s4, {t * 32768}')
            s = slot(p)
            a(f'buffer_load_dwordx4 v[{s}:{s+3}], {"v2" if isV else "v1"}, {"s[12:15]" if isV else "s[8:11]"}, s5 offen offset:{j*1024} nt')
        def setup_rest():
            for j in range(4):
                a(f'v_cmp_eq_u32 vcc, {j}, v6')
                a(f'v_cndmask_b32 v{MK+j}, 0, 1.0, vcc')
            a('v_and_b32 v8, 1, v5')
            a('v_lshlrev_b32 v9, 8, v8')
            a('v_lshl_add_u32 v9, v6, 6, v9')
            a('v_lshl_add_u32 v9, v4, 4, v9')
            a('s_lshl_b32 s6, s3, 2')
            a('v_add_u32 v10, s6, v4')
            a('v_lshl_add_u32 v10, v8, 5, v10')
            a('v_lshlrev_b32 v10, 3, v10')
            a('v_lshlrev_b32 v11, 3, v8')
            a('v_and_b32 v12, 1, v4')
            a('v_lshlrev_b32 v12, 9, v12')
            a('v_lshl_add_u32 v12, v3, 5, v12')
            a('v_lshrrev_b32 v13, 1, v4')
            a('v_lshl_add_u32 v12, v13, 4, v12')
            a('s_lshl_b32 s6, s3, 10')
            a('v_add_u32 v12, s6, v12')
            a('v_lshrrev_b32 v13, 1, v6')
            a('v_lshrrev_b32 v14, 3, v3')
            a('v_lshl_add_u32 v13, v14, 1, v13')
            a('v_and_b32 v14, 1, v0')
            a('v_cmp_eq_u32 vcc, 1, v14')
            a('v_mov_b32 v15, 0xffff')
            a('v_mov_b32 v16, 0xffff0000')
            a('v_cndmask_b32 v15, v15, v16, vcc')
            for j in range(4):
                a(f'v_cmp_eq_u32 vcc, {j}, v13')
                a(f'v_cndmask_b32 v{PM+j}, 0, v15, vcc')
            for r in range(4): a(f'v_mov_b32 v{ACC+r}, 0')
            a('s_mov_b32 s7, 0x3db504f3')
            a(f's_mov_b32 s6, {LOG2E:#x}')
        def consumeK(c):
            for i in range(4):
                s = slot(4 * c + i)
                a(f'v_mfma_f32_16x16x32_bf16 v[{D+4*i}:{D+4*i+3}], v[{s}:{s+3}], v[{Q}:{Q+3}], 0')
            for i in range(4):
                for v in range(4):
                    op = 'v_mul_f32_dpp' if i == 0 else 'v_fmac_f32_dpp'
                    a(f'{op} v{U+v}, v{D+4*i+v}, v{MK+i} quad_perm:[{v},{v},{v},{v}] {DPPALL}')
            a(f'v_add_f32 v{U}, v{U}, v{U+1}')
            a(f'v_add_f32 v{U+2}, v{U+2}, v{U+3}')
            a(f'v_add_f32 v{U}, v{U}, v{U+2}')
            self.R(f'v{U}', f'v{U}')
            a(f'v_mul_f32 v{U}, s7, v{U}')
            self.R(f'v{SC+c}', f'v{U}')
        def stats():
            self.stamp(2)
            s = [f'v{SC+t}' for t in range(16)]
            a(f'v_max3_f32 v14, {s[0]}, {s[1]}, {s[2]}')
            a(f'v_max3_f32 v15, {s[3]}, {s[4]}, {s[5]}')
            a(f'v_max3_f32 v14, v14, {s[6]}, {s[7]}')
            a(f'v_max3_f32 v15, v15, {s[8]}, {s[9]}')
            a(f'v_max3_f32 v14, v14, {s[10]}, {s[11]}')
            a(f'v_max3_f32 v15, v15, {s[12]}, {s[13]}')
            a(f'v_max3_f32 v14, v14, {s[14]}, {s[15]}')
            a('v_max_f32 v14, v14, v15')
            self.dpp_red('v_max_f32', [('v14', None)], ['x1', 'x2'])
            for t in range(16): a(f'v_sub_f32 v{D+t}, {s[t]}, v14')
            for t in range(16): a(f'v_mul_f32 v{D+t}, s6, v{D+t}')
            for t in range(16): a(f'v_exp_f32 v{D+t}, v{D+t}')
            for st in (8, 4, 2, 1):
                for t in range(st): a(f'v_add_f32 v{D+t}, v{D+t}, v{D+t+st}')
            a(f'v_mov_b32 v15, v{D}')
            self.dpp_red('v_add_f32', [('v15', None)], ['x1', 'x2'])
            a('s_mov_b32 exec_lo, 0x00110011')
            a('s_mov_b32 exec_hi, 0x00110011')
            a(f'ds_write_b64 v10, v[14:15] offset:{L_STAT}')
            a('s_mov_b64 exec, 1')
            a('v_mov_b32 v16, 1')
            a('s_waitcnt lgkmcnt(0)')
            a(f'ds_add_u32 v7, v16 offset:{L_CSTAT}')
            a('s_mov_b64 exec, -1')
        def gateQ():
            self.stamp(1)
            self.spin_lds(L_FQ, 1, 'v7', 'v13', code=1)
            a(f'ds_read_b128 v[{Q}:{Q+3}], v9 offset:{L_QL}')
            a('s_waitcnt lgkmcnt(0)')
            self.stamp(7)
        def gateS():
            self.stamp(3)
            self.spin_lds(L_FS, 1, 'v7', 'v13', code=2)
            self.stamp(4)
            a(f'ds_read_b64 v[14:15], v11 offset:{L_GSTAT}')
            a('s_waitcnt lgkmcnt(0)')
            s = [f'v{SC+t}' for t in range(16)]
            for t in range(16): a(f'v_sub_f32 {s[t]}, {s[t]}, v14')
            for t in range(16): a(f'v_mul_f32 {s[t]}, s6, {s[t]}')
            for t in range(16): a(f'v_exp_f32 {s[t]}, {s[t]}')
            for t in range(16): a(f'v_mul_f32 {s[t]}, {s[t]}, v15')
            for t in range(16): a(f'v_cvt_pk_bf16_f32 {s[t]}, {s[t]}, {s[t]}')
        def consumeV(c):
            t = c - 16
            for i in range(4):
                for j in range(4):
                    a(f'v_and_b32_dpp v{D+4*i+j}, v{SC+t}, v{PM+j} quad_perm:[{i},{i},{i},{i}] {DPPALL}')
            for i in range(4):
                s = slot(4 * c + i)
                a(f'v_mfma_f32_16x16x32_bf16 v[{ACC}:{ACC+3}], v[{D+4*i}:{D+4*i+3}], v[{s}:{s+3}], v[{ACC}:{ACC+3}]')
        p = 0; c = 0; known = -1; gq = gs = False
        def wait(n):
            nonlocal known
            k = p - n - 1
            if k > known:
                a(f's_waitcnt vmcnt({n})'); known = k
        def gate_ok(cc): return gq if cc < 16 else gs
        def consume():
            nonlocal c
            need = 4 * c + 3
            if need > known: wait(p - need - 1)
            if c < 16: consumeK(c)
            else: consumeV(c)
            c += 1
            if c == 5: self.stamp(8)
            if c == 10: self.stamp(9)
            if c == 21: self.stamp(10)
            if c == 26: self.stamp(11)
            if c == 16: stats()
        while not (p == 128 and c == 32):
            can = p < 128 and (p < L or (p - L) // 4 < c)
            if can:
                if p >= W: wait(W - 1)
                issue(p); p += 1
                if p == W:
                    setup_rest()
                    a('s_barrier')
                if p == self.PG and self.PG > 0:
                    a('s_mov_b64 exec, 1')
                    a('v_mov_b32 v16, 1')
                    a(f'ds_add_u32 v7, v16 offset:{L_CRF}')
                    a('s_mov_b64 exec, -1')
                if c < 32 and gate_ok(c) and known >= 4 * c + 3: consume()
            else:
                if c < 16 and not gq: gateQ(); gq = True
                elif c >= 16 and not gs: gateS(); gs = True
                else: consume()
        self.stamp(5)
        a(f'ds_write_b128 v12, v[{ACC}:{ACC+3}] offset:{L_OP}')
        a('s_mov_b64 exec, 1')
        a('v_mov_b32 v15, 1')
        a('s_waitcnt lgkmcnt(0)')
        a(f'ds_add_rtn_u32 v13, v7, v15 offset:{L_CO}')
        a('s_waitcnt lgkmcnt(0)')
        a('v_readfirstlane_b32 s91, v13')
        a('s_mov_b64 exec, -1')
        a('s_cmp_eq_u32 s91, 7')
        a('s_cbranch_scc0 L_STREAM_END')
        for w in range(8):
            a(f'ds_read_b128 v[{RB+4*w}:{RB+4*w+3}], v2 offset:{L_OP + w*1024}')
        a('s_lshl_b32 s5, s2, 10')
        a(f's_add_u32 s5, s5, {WS_OPART}')
        a('s_waitcnt lgkmcnt(0)')
        for st in (4, 2, 1):
            for w in range(st):
                for r in range(4):
                    a(f'v_add_f32 v{RB+4*w+r}, v{RB+4*w+r}, v{RB+4*(w+st)+r}')
        for r in range(4): a(f'v_or_b32 v{RB+r}, 1, v{RB+r}')
        a(f'buffer_store_dwordx4 v[{RB}:{RB+3}], v2, s[16:19], s5 offen sc1')
        a.label('L_STREAM_END')
        self.stamp(6)
        if self.dbg: a('v_writelane_b32 v19, s95, 14')
        self.stamp_flush('v13')
        a('s_endpgm')

    WB = 56
    def gemv64(self, nl, first_wait=None):
        a = self.a; WB = self.WB
        XV = 26
        for k in range(0, nl, 4):
            if nl - k >= 4:
                a(f'ds_read_b128 v[{XV+k}:{XV+k+3}], v1 offset:{4*k}')
            else:
                a(f'ds_read_b64 v[{XV+k}:{XV+k+1}], v1 offset:{4*k}')
        if first_wait: a(first_wait)
        a('s_waitcnt lgkmcnt(0)')
        for i in range(nl):
            A = 44 + 4 * (i % 2)
            for j in range(4):
                a(f'v_and_b32 v{A+j}, v{XV+i}, v{4+j}')
            c = '0' if i == 0 else 'v[52:55]'
            a(f'v_mfma_f32_16x16x32_bf16 v[52:55], v[{A}:{A+3}], v[{WB+4*i}:{WB+4*i+3}], {c}')

    def part_write(self, part):
        a = self.a
        a('s_mov_b32 exec_lo, 0x00ff00ff')
        a('s_mov_b32 exec_hi, 0xff00ff00')
        a(f'ds_write_b128 v3, v[52:55] offset:{part}')
        a('s_mov_b64 exec, -1')

    def last_arriver(self, cnt, skip):
        a = self.a
        a('s_mov_b64 exec, 1')
        a('v_mov_b32 v22, 1')
        a('s_waitcnt lgkmcnt(0)')
        a(f'ds_add_rtn_u32 v23, v9, v22 offset:{cnt}')
        a('s_waitcnt lgkmcnt(0)')
        a('v_readfirstlane_b32 s91, v23')
        a('s_mov_b64 exec, -1')
        a('s_cmp_eq_u32 s91, 3')
        a(f's_cbranch_scc0 {skip}')

    def part_sum16(self, part):
        a = self.a
        a('s_mov_b64 exec, 0xffff')
        a('v_lshlrev_b32 v22, 4, v0')
        for k in range(8):
            a(f'ds_read_b128 v[{24+4*k}:{27+4*k}], v22 offset:{part + k*PSTR*4}')
        a('s_waitcnt lgkmcnt(0)')
        for st in (4, 2, 1):
            for w in range(st):
                for r in range(4):
                    a(f'v_add_f32 v{24+4*w+r}, v{24+4*w+r}, v{24+4*(w+st)+r}')

    def publish_bf16(self, soff):
        a = self.a
        a('v_cvt_pk_bf16_f32 v24, v24, v25')
        a('v_cvt_pk_bf16_f32 v26, v26, v27')
        a('v_mov_b32 v25, s56')
        a('v_mov_b32 v27, s56')
        a(f'buffer_store_dwordx4 v[24:27], v22, s[16:19], {soff} offen sc1')
        a('s_mov_b64 exec, -1')

    def t_write(self, r0):
        a = self.a
        for k in range(4):
            a(f'v_cvt_pk_bf16_f32 v{r0+k}, v{r0+k}, v{r0+k}')
        for k in range(4):
            a(f'ds_write_b32 v2, v{r0+k} offset:{80*k}')

    def ln_stats(self, y0):
        a = self.a
        a(f'v_add_f32 v22, v{y0}, v{y0+1}')
        for k in range(2, 9): a(f'v_add_f32 v22, v22, v{y0+k}')
        self.dpp_red('v_add_f32', [('v22', 'v23')], ['x1', 'x2', 'hm', 'rm', 'p16', 'p32'])
        a(f'v_mul_f32 v22, {fbits(1/576):#x}, v22')
        for k in range(9): a(f'v_sub_f32 v{y0+k}, v{y0+k}, v22')
        a(f'v_mul_f32 v23, v{y0}, v{y0}')
        for k in range(1, 9): a(f'v_fmac_f32 v23, v{y0+k}, v{y0+k}')
        self.dpp_red('v_add_f32', [('v23', f'v{y0}')], ['x1', 'x2', 'hm', 'rm', 'p16', 'p32'])
        a(f'v_mul_f32 v23, {fbits(1/576):#x}, v23')
        self.R('v22', 'v22')
        self.R('v23', 'v23')
        a(f'v_add_f32 v23, {fbits(1e-5):#x}, v23')
        self.R('v23', 'v23')
        a('v_sqrt_f32 v23, v23')
        self.R('v23', 'v23')
        a('v_rcp_f32 v23, v23')
        a('v_readfirstlane_b32 s92, v22')
        a('v_readfirstlane_b32 s93, v23')

    def unpack4(self, dst, lo, hi):
        a = self.a
        a(f'v_and_b32 v{dst+1}, s94, {lo}')
        a(f'v_and_b32 v{dst+3}, s94, {hi}')
        a(f'v_lshlrev_b32 v{dst}, 16, {lo}')
        a(f'v_lshlrev_b32 v{dst+2}, 16, {hi}')

    def wloads(self, srd, n, stride8, base_s, pol, paced, half=None, start=0, pend=0):
        a = self.a; WB = self.WB
        cnt = pend
        a(f's_mov_b32 s61, {base_s}')
        for i in range(n):
            r = WB + 4 * (start + i)
            if paced and cnt >= self.WA:
                a(f's_waitcnt vmcnt({self.WA - (2 if half else 1)})')
            if half:
                a('s_mov_b64 exec, s[62:63]')
                a(f'buffer_load_dwordx4 v[{r}:{r+3}], v8, {half[0]}, s61 offen {pol}')
                a('s_mov_b64 exec, s[64:65]')
                a(f'buffer_load_dwordx4 v[{r}:{r+3}], v8, {half[1]}, s61 offen {pol}')
                cnt += 2
            else:
                a(f'buffer_load_dwordx4 v[{r}:{r+3}], v8, {srd}, s61 offen {pol}')
                cnt += 1
            if i + 1 < n: a(f's_add_u32 s61, s61, {stride8}')
        if half: a('s_mov_b64 exec, -1')
        return cnt

    def voff64(self, stride, chunkmask=7):
        a = self.a
        a('v_lshrrev_b32 v8, 3, v0')
        a(f'v_mul_u32_u24 v8, {stride}, v8')
        a(f'v_and_b32 v22, {chunkmask}, v0')
        a('v_lshl_add_u32 v8, v22, 4, v8')

    def aux(self):
        a = self.a; WB = self.WB
        a.label('L_AUX')
        self.vstamp = 19
        self.tmp2 = 'v23'
        a('s_setprio 2')
        a('s_load_dwordx2 s[20:21], s[0:1], 24')
        a('s_load_dwordx2 s[24:25], s[0:1], 32')
        a('s_load_dwordx2 s[28:29], s[0:1], 48')
        a('s_load_dwordx2 s[32:33], s[0:1], 56')
        a('s_load_dwordx2 s[36:37], s[0:1], 64')
        a('s_load_dwordx2 s[40:41], s[0:1], 80')
        a('s_load_dwordx2 s[44:45], s[0:1], 0')
        a('s_load_dwordx2 s[48:49], s[0:1], 72')
        a('s_load_dwordx2 s[52:53], s[0:1], 88')
        for (r, sz) in ((22, 4718592), (26, 4718592), (30, 5308416), (34, 5308416), (38, 5308416), (42, 3981312), (46, 1152), (50, 1152), (54, 1152)):
            a(f's_mov_b32 s{r}, {sz}'); a(f's_mov_b32 s{r+1}, 0x20000')
        a('s_sub_u32 s57, s3, 8')
        if self.dbg: a('v_mov_b32 v19, 0')
        a('v_mov_b32 v9, 0')
        a('v_lshlrev_b32 v22, 2, v0')
        a('s_cmp_lg_u32 s57, 0')
        a('s_cbranch_scc1 L_A_NOINIT')
        a('s_mov_b64 exec, 0xffff')
        a('ds_write_b32 v22, v9')
        a('s_mov_b64 exec, -1')
        a.label('L_A_NOINIT')
        a('v_lshrrev_b32 v23, 3, v0')
        a('v_mul_u32_u24 v1, 80, v23')
        a('s_mul_i32 s58, s57, 640')
        a(f's_add_u32 s58, s58, {L_T}')
        a('v_add_u32 v1, s58, v1')
        a('v_and_b32 v23, 1, v0')
        a('v_mul_u32_u24 v2, 320, v23')
        a('v_lshrrev_b32 v23, 1, v0')
        a('v_lshl_add_u32 v2, v23, 2, v2')
        a('v_add_u32 v2, s58, v2')
        a('v_lshrrev_b32 v23, 5, v0')
        a('s_lshl_b32 s58, s57, 1')
        a('v_add_u32 v23, s58, v23')
        a(f'v_mul_u32_u24 v3, {PSTR*4}, v23')
        a('v_and_b32 v23, 7, v0')
        a('v_lshl_add_u32 v3, v23, 5, v3')
        a('v_bfe_u32 v23, v0, 4, 1')
        a('v_lshl_add_u32 v3, v23, 4, v3')
        a('v_and_b32 v23, 1, v0')
        a('v_cmp_eq_u32 vcc, 1, v23')
        a('v_mov_b32 v24, 0xffff')
        a('v_mov_b32 v25, 0xffff0000')
        a('v_cndmask_b32 v24, v24, v25, vcc')
        a('v_bfe_u32 v23, v0, 1, 2')
        for j in range(4):
            a(f'v_cmp_eq_u32 vcc, {j}, v23')
            a(f'v_cndmask_b32 v{4+j}, 0, v24, vcc')
        a('s_mov_b32 s94, 0xffff0000')
        a('s_mov_b32 s62, 0x0f0f0f0f'); a('s_mov_b32 s63, 0x0f0f0f0f')
        a('s_mov_b32 s64, 0xf0f0f0f0'); a('s_mov_b32 s65, 0xf0f0f0f0')
        a('s_mov_b32 s66, -1'); a('s_mov_b32 s67, 0xf')
        a('s_mul_i32 s58, s57, 288')
        a('v_lshlrev_b32 v21, 3, v0')
        a('v_add_u32 v21, s58, v21')
        a('v_lshlrev_b32 v18, 1, v21')
        a('s_lshr_b32 s68, s2, 4')
        a('s_and_b32 s69, s2, 15')
        a('s_waitcnt lgkmcnt(0)')
        a('buffer_load_dword v20, v9, s[16:19], 0 offen sc1')
        a('s_barrier')
        self.stamp(0)
        a('s_cmp_lt_u32 s2, 144'); a('s_cbranch_scc1 L_H_MLP')
        a('s_cmp_lt_u32 s2, 208'); a('s_cbranch_scc1 L_H_Q')
        a('s_cmp_lt_u32 s2, 226'); a('s_cbranch_scc1 L_H_MODA')
        self.getT()
        a('s_branch L_X1')

        a.label('L_H_MLP')
        self.getT()
        a('s_cmp_eq_u32 s57, 0'); a('s_cbranch_scc1 L_X1')
        a('s_branch L_D')

        a.label('L_H_MODA')
        a('s_sub_u32 s60, s2, 208')
        self.mod_unit_head()
        a('s_branch L_X1')

        a.label('L_H_Q')
        self.q_unit()

        a.label('L_X1')
        a('s_cmp_lg_u32 s57, 0'); a('s_cbranch_scc1 L_D')
        a('s_lshl_b32 s58, s68, 10')
        a(f's_add_u32 s58, s58, {WS_QG}')
        a('v_lshlrev_b32 v22, 4, v0')
        self.poll([(24, 'v22', 's58', 0)], ('tag', [1, 3]), None, code=3, tmp='v28', sleep=4)
        a('v_mov_b32 v25, v26')
        a('v_lshlrev_b32 v23, 3, v0')
        a(f'ds_write_b64 v23, v[24:25] offset:{L_QL}')
        a('v_mov_b32 v23, 1')
        a('s_waitcnt lgkmcnt(0)')
        a(f'ds_write_b32 v9, v23 offset:{L_FQ}')
        self.stamp(2)
        for r in range(4): a(f'v_mov_b32 v{24+r}, 0')
        a('s_lshl_b32 s58, s2, 10')
        a(f's_add_u32 s58, s58, {WS_OPART}')
        a('buffer_store_dwordx4 v[24:27], v22, s[16:19], s58 offen sc1')
        a('s_cmp_lt_u32 s2, 144'); a('s_cbranch_scc0 L_Z_NOTMLP')
        a('s_mul_i32 s58, s2, 2304')
        a(f's_add_u32 s58, s58, {WS_DPART}')
        a('buffer_store_dwordx4 v[24:27], v22, s[16:19], s58 offen sc1')
        a('buffer_store_dwordx4 v[24:27], v22, s[16:19], s58 offen offset:1024 sc1')
        a('s_mov_b64 exec, 0xffff')
        a('buffer_store_dwordx4 v[24:27], v22, s[16:19], s58 offen offset:2048 sc1')
        a('s_mov_b64 exec, -1')
        a('s_branch L_Z_DONE')
        a.label('L_Z_NOTMLP')
        self.wo_unit_index('L_Z_DONE')
        self.wo_kg_nb()
        a('s_mul_i32 s58, s70, 2304')
        a('s_lshl_b32 s59, s71, 8')
        a('s_add_u32 s58, s58, s59')
        a(f's_add_u32 s58, s58, {WS_APART}')
        a('s_mov_b64 exec, 0xffff')
        a('buffer_store_dwordx4 v[24:27], v22, s[16:19], s58 offen sc1')
        a('s_mov_b64 exec, -1')
        a.label('L_Z_DONE')
        a('v_mov_b32 v23, s56')
        a('s_lshl_b32 s58, s2, 2')
        a(f's_add_u32 s58, s58, {WS_READY}')
        a('s_waitcnt vmcnt(0)')
        a('s_mov_b64 exec, 1')
        a('buffer_store_dword v23, v9, s[16:19], s58 offen sc1')
        a('s_mov_b64 exec, -1')

        a.label('L_D')
        if 'noD' in self.exp: a('s_branch L_F')
        a('s_cmp_ge_u32 s2, 252'); a('s_cbranch_scc1 L_F')
        if self.PG > 0:
            self.spin_lds(L_CRF, 8, 'v9', 'v22', code=13, sleep=4)
        self.stamp(11)
        a('s_cmp_lt_u32 s2, 144'); a('s_cbranch_scc1 L_D_MLP')
        a('s_cmp_lt_u32 s2, 208'); a('s_cbranch_scc1 L_D_WO')
        a('s_cmp_lt_u32 s2, 244'); a('s_cbranch_scc1 L_D_MODR')
        a('s_cmp_lt_u32 s2, 252'); a('s_cbranch_scc1 L_D_WO')
        a('s_branch L_F')
        a.label('L_D_MODR')
        a('s_sub_u32 s60, s2, 190')
        self.mod_unit(L_PART1, L_CH1, True, 'r')
        a('s_branch L_F')
        a.label('L_D_WO')
        self.wo_unit_index(None)
        self.wo_kg_nb()
        self.voff64(1152)
        a('s_lshl_b32 s58, s70, 9')
        a('s_lshl_b32 s59, s57, 7')
        a('s_add_u32 s58, s58, s59')
        a('s_mul_i32 s58, s58, 1152')
        a('s_lshl_b32 s59, s71, 7')
        a('s_add_u32 s58, s58, s59')
        self.wloads('s[24:27]', 16, 8 * 1152, 's58', self.wpol, True)
        a('s_branch L_F')
        a.label('L_D_MLP')
        self.mlp_unit_index()
        self.voff64(9216, 3)
        a('s_mul_i32 s58, s57, %d' % (144 * 9216))
        a('s_lshl_b32 s59, s60, 6')
        a('s_add_u32 s58, s58, s59')
        n = self.wloads(None, 18, 8 * 9216, 's58', self.gupol, True, half=('s[28:31]', 's[32:35]'))
        self.voff64(1152)
        a('s_lshl_b32 s58, s60, 5')
        a('s_lshl_b32 s59, s57, 3')
        a('s_add_u32 s58, s58, s59')
        a('s_mul_i32 s58, s58, 1152')
        self.wloads('s[36:39]', 9, 128, 's58', self.wpol, True, start=18, pend=n)

        a.label('L_F')
        self.stamp(3)
        a('s_cmp_lg_u32 s57, 0'); a('s_cbranch_scc1 L_E')
        self.stats_exchange()

        a.label('L_E')
        if 'noE' in self.exp: a('s_branch L_AUX_END')
        a('s_cmp_lt_u32 s2, 208'); a('s_cbranch_scc1 L_E_GO')
        a('s_cmp_lt_u32 s2, 244'); a('s_cbranch_scc1 L_AUX_END')
        a('s_cmp_lt_u32 s2, 252'); a('s_cbranch_scc0 L_AUX_END')
        a.label('L_E_GO')
        self.spin_lds(L_FS, 1, 'v9', 'v22', code=14, sleep=8)
        self.stamp(12)
        a('v_lshlrev_b32 v22, 4, v0')
        a(f's_mov_b32 s58, {WS_READY}')
        self.poll([(24, 'v22', 's58', 0)], ('tag', [0, 1, 2, 3]), None, code=5, tmp='v28', sleep=8)
        a('s_cmp_lt_u32 s2, 144'); a('s_cbranch_scc0 L_G_WO')
        self.mlp_tail()
        a('s_branch L_AUX_END')
        a.label('L_G_WO')
        self.wo_tail()
        a.label('L_AUX_END')
        self.stamp(15)
        if self.dbg:
            a('v_writelane_b32 v19, s95, 14')
        self.stamp_flush('v13')
        a.label('L_END')
        a('s_endpgm')

    def getT(self):
        a = self.a
        a('s_waitcnt vmcnt(0)')
        a('v_readfirstlane_b32 s56, v20')
        a('s_mul_i32 s56, s56, 1664525')
        a('s_add_u32 s56, s56, 1013904223')

    def mod_unit_head(self):
        a = self.a
        a('s_mov_b64 exec, s[66:67]')
        a('buffer_load_dwordx2 v[24:25], v21, s[48:51], 0 offen')
        a('s_mov_b64 exec, -1')
        self.voff64(6912)
        a('s_mul_i32 s59, s57, %d' % (144 * 6912))
        a('s_lshl_b32 s58, s60, 7')
        a('s_add_u32 s59, s59, s58')
        self.wloads('s[40:43]', 18, 8 * 6912, 's59', self.wpol, False)
        a('s_waitcnt vmcnt(18)')
        a('v_readfirstlane_b32 s56, v20')
        a('s_mul_i32 s56, s56, 1664525')
        a('s_add_u32 s56, s56, 1013904223')
        self.silu_T()
        self.dump(0, 28)
        self.gemv64(18, 's_waitcnt vmcnt(0)')
        a('s_nop 7')
        self.dump(1, 52)
        self.part_write(L_PART0)
        skip = a.newlabel('MODSKIP')
        self.last_arriver(L_CH0, skip)
        self.part_sum16(L_PART0)
        a('s_lshl_b32 s58, s60, 8')
        a(f's_add_u32 s58, s58, {WS_MODG}')
        self.publish_bf16('s58')
        a.label(skip)
        self.stamp(1)

    def silu_T(self):
        a = self.a
        a('s_mov_b64 exec, s[66:67]')
        self.unpack4(28, 'v24', 'v25')
        import struct
        L2E = 1.4426950408889634
        hi_bits = fbits(L2E) & 0xffffff00
        hi = struct.unpack('<f', struct.pack('<I', hi_bits))[0]
        lo_ln2 = (L2E - hi) * 0.6931471805599453
        for k in range(4): a(f'v_mul_f32 v{32+k}, {fbits(-hi):#x}, v{28+k}')
        for k in range(4): a(f'v_mul_f32 v{36+k}, {fbits(-lo_ln2):#x}, v{28+k}')
        for k in range(4): a(f'v_min_f32 v{32+k}, {fbits(126.0):#x}, v{32+k}')
        for k in range(4): a(f'v_exp_f32 v{32+k}, v{32+k}')
        for k in range(4): a(f'v_fmac_f32 v{32+k}, v{32+k}, v{36+k}')
        for k in range(4): a(f'v_add_f32 v{32+k}, 1.0, v{32+k}')
        for k in range(4): a(f'v_rcp_f32 v{36+k}, v{32+k}')
        for k in range(4): a(f'v_mul_f32 v{40+k}, v{28+k}, v{36+k}')
        for k in range(4): a(f'v_fma_f32 v{32+k}, -v{40+k}, v{32+k}, v{28+k}')
        for k in range(4): a(f'v_fma_f32 v{28+k}, v{32+k}, v{36+k}, v{40+k}')
        self.t_write(28)
        a('s_mov_b64 exec, -1')

    def mod_unit(self, part, cnt, paced, tag):
        a = self.a
        a('s_mov_b64 exec, s[66:67]')
        a('buffer_load_dwordx2 v[24:25], v21, s[48:51], 0 offen')
        a('s_mov_b64 exec, -1')
        self.voff64(6912)
        a('s_mul_i32 s59, s57, %d' % (144 * 6912))
        a('s_lshl_b32 s58, s60, 7')
        a('s_add_u32 s59, s59, s58')
        self.wloads('s[40:43]', 18, 8 * 6912, 's59', self.wpol, True, pend=1)
        a('s_waitcnt vmcnt(18)')
        self.silu_T()
        self.gemv64(18, 's_waitcnt vmcnt(0)')
        self.part_write(part)
        skip = a.newlabel('MODSKIP')
        self.last_arriver(cnt, skip)
        self.part_sum16(part)
        a('s_lshl_b32 s58, s60, 8')
        a(f's_add_u32 s58, s58, {WS_MODG}')
        self.publish_bf16('s58')
        a.label(skip)

    def q_unit(self):
        a = self.a
        a('s_sub_u32 s60, s2, 144')
        a('s_mov_b64 exec, s[66:67]')
        a('buffer_load_dwordx2 v[24:25], v21, s[44:47], 0 offen')
        a('s_mov_b64 exec, -1')
        a('v_lshlrev_b32 v22, 1, v0')
        for k in range(9):
            a(f'buffer_load_ushort v{28+k}, v22, s[44:47], 0 offen offset:{128*k}')
        self.voff64(8192)
        a('s_mul_i32 s59, s57, %d' % (144 * 8192))
        a('s_lshl_b32 s58, s60, 7')
        a('s_add_u32 s59, s59, s58')
        self.wloads('s[20:23]', 18, 8 * 8192, 's59', self.wpol, False)
        a('s_waitcnt vmcnt(18)')
        a('v_readfirstlane_b32 s56, v20')
        a('s_mul_i32 s56, s56, 1664525')
        a('s_add_u32 s56, s56, 1013904223')
        for k in range(9): a(f'v_lshlrev_b32 v{28+k}, 16, v{28+k}')
        self.ln_stats(28)
        self.unpack4(10, 'v24', 'v25')
        for k in range(4): a(f'v_subrev_f32 v{10+k}, s92, v{10+k}')
        for k in range(4): self.R(f'v{10+k}', f'v{10+k}')
        for k in range(4): a(f'v_mul_f32 v{10+k}, s93, v{10+k}')
        for k in range(4): self.R(f'v{10+k}', f'v{10+k}')
        a('s_mov_b64 exec, s[66:67]')
        a(f's_mov_b32 s58, {WS_MODG}')
        self.poll([(24, 'v18', 's58', 0), (28, 'v18', 's58', 2304)], ('tag', [1, 3]), 's[66:67]', code=4, tmp='v32', sleep=2)
        self.stamp(1)
        self.unpack4(32, 'v24', 'v26')
        self.unpack4(36, 'v28', 'v30')
        for k in range(4): a(f'v_add_f32 v{36+k}, 1.0, v{36+k}')
        for k in range(4): self.R(f'v{36+k}', f'v{36+k}')
        for k in range(4): a(f'v_mul_f32 v{36+k}, v{36+k}, v{10+k}')
        for k in range(4): self.R(f'v{36+k}', f'v{36+k}')
        for k in range(4): a(f'v_add_f32 v{36+k}, v{36+k}, v{32+k}')
        self.t_write(36)
        a('s_mov_b64 exec, -1')
        self.gemv64(18)
        self.part_write(L_PART0)
        skip = a.newlabel('QSKIP')
        self.last_arriver(L_CH0, skip)
        self.part_sum16(L_PART0)
        a('s_lshl_b32 s58, s60, 8')
        a(f's_add_u32 s58, s58, {WS_QG}')
        self.publish_bf16('s58')
        a.label(skip)

    def wo_unit_index(self, none_label):
        a = self.a
        l1 = a.newlabel('WOI'); l2 = a.newlabel('WOI')
        a('s_sub_u32 s60, s2, 144')
        a(f's_cmp_lt_u32 s2, 208'); a(f's_cbranch_scc1 {l2}')
        if none_label:
            a('s_cmp_lt_u32 s2, 244'); a(f's_cbranch_scc1 {none_label}')
            a('s_cmp_lt_u32 s2, 252'); a(f's_cbranch_scc0 {none_label}')
        a('s_sub_u32 s60, s2, 180')
        a.label(l2)

    def wo_kg_nb(self):
        a = self.a
        a('s_mul_i32 s70, s60, 57')
        a('s_lshr_b32 s70, s70, 9')
        a('s_mul_i32 s71, s70, 9')
        a('s_sub_u32 s71, s60, s71')

    def mlp_unit_index(self):
        a = self.a
        a('s_and_b32 s60, s2, 0xf0')
        a('s_and_b32 s58, s2, 7')
        a('s_lshl_b32 s58, s58, 1')
        a('s_add_u32 s60, s60, s58')
        a('s_bfe_u32 s58, s2, 0x10003')
        a('s_add_u32 s60, s60, s58')

    def stats_exchange(self):
        a = self.a
        self.spin_lds(L_CSTAT, 8, 'v9', 'v22', code=6)
        self.stamp(4)
        a('v_lshlrev_b32 v22, 3, v0')
        a(f'ds_read_b64 v[24:25], v22 offset:{L_STAT}')
        a('s_waitcnt lgkmcnt(0)')
        a('v_mov_b32 v26, v24')
        self.dpp_red('v_max_f32', [('v26', 'v27')], ['x1', 'x2', 'hm', 'rm', 'p16'])
        a('v_sub_f32 v24, v24, v26')
        a(f'v_mul_f32 v24, {LOG2E:#x}, v24')
        a('v_exp_f32 v24, v24')
        a('v_mul_f32 v25, v25, v24')
        self.dpp_red('v_add_f32', [('v25', 'v27')], ['x1', 'x2', 'hm', 'rm', 'p16'])
        a('v_mov_b32 v24, v26')
        a('v_mov_b32 v26, 0')
        a('v_mov_b32 v27, s56')
        a('v_lshrrev_b32 v22, 5, v0')
        a('v_lshlrev_b32 v22, 8, v22')
        a('s_lshl_b32 s58, s68, 9')
        a(f's_add_u32 s58, s58, {WS_STATS}')
        a('s_lshl_b32 s59, s69, 4')
        a('s_add_u32 s59, s59, s58')
        a('s_mov_b32 exec_lo, 1'); a('s_mov_b32 exec_hi, 1')
        a('buffer_store_dwordx4 v[24:27], v22, s[16:19], s59 offen sc1')
        a('s_mov_b64 exec, -1')
        a('v_and_b32 v22, 31, v0')
        a('v_lshlrev_b32 v22, 4, v22')
        self.poll([(28, 'v22', 's58', 0)], ('tag', [3]), None, code=7, tmp='v32', sleep=2)
        a('v_mov_b32 v26, v28')
        self.dpp_red('v_max_f32', [('v26', None)], ['x1', 'x2', 'hm', 'rm'])
        a('v_sub_f32 v28, v28, v26')
        a(f'v_mul_f32 v28, {LOG2E:#x}, v28')
        a('v_exp_f32 v28, v28')
        a('v_mul_f32 v27, v29, v28')
        self.dpp_red('v_add_f32', [('v27', None)], ['x1', 'x2', 'hm', 'rm'])
        a('v_rcp_f32 v27, v27')
        a('v_lshrrev_b32 v22, 4, v0')
        a('v_lshlrev_b32 v22, 3, v22')
        a('s_mov_b32 exec_lo, 0x00010001'); a('s_mov_b32 exec_hi, 0')
        a(f'ds_write_b64 v22, v[26:27] offset:{L_GSTAT}')
        a('s_mov_b64 exec, -1')
        a('v_mov_b32 v23, 1')
        a('s_waitcnt lgkmcnt(0)')
        a(f'ds_write_b32 v9, v23 offset:{L_FS}')
        self.stamp(5)

    def wo_tail(self):
        a = self.a; WB = self.WB
        G = WB + 64
        self.wo_unit_index(None)
        self.wo_kg_nb()
        a('s_lshl_b32 s58, s70, 1')
        a('s_lshr_b32 s59, s57, 1')
        a('s_add_u32 s58, s58, s59')
        a('s_lshl_b32 s58, s58, 14')
        a('s_and_b32 s59, s57, 1')
        a('s_lshl_b32 s59, s59, 9')
        a('s_add_u32 s58, s58, s59')
        a(f's_add_u32 s58, s58, {WS_OPART}')
        a('v_lshrrev_b32 v22, 5, v0')
        a('v_lshlrev_b32 v22, 10, v22')
        a('v_and_b32 v23, 31, v0')
        a('v_lshl_add_u32 v22, v23, 4, v22')
        a('s_add_u32 s59, s58, 4096'); a('s_add_u32 s72, s58, 8192'); a('s_add_u32 s73, s58, 12288')
        so = ['s58', 's59', 's72', 's73']
        loads = [(G + 4 * i, 'v22', so[i // 2], (i % 2) * 2048) for i in range(8)]
        self.spin_lds(L_CO, 8, 'v9', 'v24', code=12, sleep=2)
        self.poll(loads, ('nz',), None, code=8, tmp='v24', sleep=1, maxit=8000)
        self.stamp(6)
        for st in (4, 2, 1):
            for w in range(st):
                for r in range(4):
                    a(f'v_add_f32 v{G+4*w+r}, v{G+4*w+r}, v{G+4*(w+st)+r}')
        self.dpp_red('v_add_f32', [(f'v{G+r}', f'v{G+4+r}') for r in range(4)], ['p32'])
        a('s_mov_b32 exec_lo, -1'); a('s_mov_b32 exec_hi, 0')
        self.t_write(G)
        a('s_mov_b64 exec, -1')
        self.gemv64(16)
        self.part_write(L_PART2)
        skip = a.newlabel('WOSKIP')
        self.last_arriver(L_CH2, skip)
        self.part_sum16(L_PART2)
        for r in range(4): a(f'v_or_b32 v{24+r}, 1, v{24+r}')
        a('s_mul_i32 s58, s70, 2304')
        a('s_lshl_b32 s59, s71, 8')
        a('s_add_u32 s58, s58, s59')
        a(f's_add_u32 s58, s58, {WS_APART}')
        a('buffer_store_dwordx4 v[24:27], v22, s[16:19], s58 offen sc1')
        a('s_mov_b64 exec, -1')
        a.label(skip)
        self.stamp(7)

    def mlp_tail(self):
        a = self.a; WB = self.WB
        CB = 164
        a('s_mov_b64 exec, s[66:67]')
        a('buffer_load_dwordx2 v[44:45], v21, s[44:47], 0 offen')
        a(f's_mov_b32 s58, {WS_MODG + 2*2304}')
        self.poll([(24, 'v18', 's58', 0), (28, 'v18', 's58', 2304)], ('tag', [1, 3]), 's[66:67]', code=9, tmp='v40', sleep=8)
        self.unpack4(14, 'v24', 'v26')
        self.unpack4(48, 'v28', 'v30')
        a(f's_mov_b32 s58, {WS_MODG + 4*2304}')
        self.poll([(24, 'v18', 's58', 0), (28, 'v18', 's58', 2304)], ('tag', [1, 3]), 's[66:67]', code=9, tmp='v40', sleep=8)
        self.unpack4(CB, 'v24', 'v26')
        for k in range(4): a(f'v_add_f32 v{CB+k}, 1.0, v{CB+k}')
        for k in range(4): self.R(f'v{CB+k}', f'v{CB+k}')
        self.unpack4(32, 'v28', 'v30')
        a(f'ds_write_b128 v18, v[32:35] offset:{L_GB}')
        self.unpack4(10, 'v44', 'v45')
        a('v_cvt_pk_bf16_f32 v20, v48, v49')
        a('v_cvt_pk_bf16_f32 v21, v50, v51')
        self.stamp(6)
        so = []
        a(f's_mov_b32 s58, {WS_APART}')
        a(f's_mov_b32 s59, {WS_APART + 2*2304}')
        a(f's_mov_b32 s72, {WS_APART + 4*2304}')
        a(f's_mov_b32 s73, {WS_APART + 6*2304}')
        so = ['s58', 's59', 's72', 's73']
        loads = [(24 + 4 * i, 'v18', so[i // 2], (i % 2) * 2304) for i in range(8)]
        self.spin_lds(L_CO, 8, 'v9', 'v22', code=12, sleep=2)
        self.poll(loads, ('nz',), 's[66:67]', code=10, tmp='v22', sleep=1, maxit=8000)
        self.stamp(7)
        for st in (4, 2, 1):
            for w in range(st):
                for r in range(4):
                    a(f'v_add_f32 v{24+4*w+r}, v{24+4*w+r}, v{24+4*(w+st)+r}')
        for k in range(4): self.R(f'v{24+k}', f'v{24+k}')
        for k in range(4): a(f'v_mul_f32 v{24+k}, v{14+k}, v{24+k}')
        for k in range(4): self.R(f'v{24+k}', f'v{24+k}')
        for k in range(4): a(f'v_add_f32 v{10+k}, v{10+k}, v{24+k}')
        for k in range(4): self.R(f'v{10+k}', f'v{10+k}')
        a(f'ds_write_b128 v18, v[10:13] offset:{L_X2}')
        a('s_mov_b64 exec, -1')
        a('s_waitcnt lgkmcnt(0)')
        a('s_barrier')
        a('v_lshlrev_b32 v22, 2, v0')
        for k in range(4):
            a(f'ds_read2st64_b32 v[{28+2*k}:{29+2*k}], v22 offset0:{L_X2//256 + 2*k} offset1:{L_X2//256 + 2*k+1}' if L_X2 % 256 == 0 else '; bad')
        a(f'ds_read_b32 v36, v22 offset:{L_X2 + 2048}')
        a('s_waitcnt lgkmcnt(0)')
        self.ln_stats(28)
        a('s_mov_b64 exec, s[66:67]')
        for k in range(4): a(f'v_subrev_f32 v{24+k}, s92, v{10+k}')
        for k in range(4): self.R(f'v{24+k}', f'v{24+k}')
        for k in range(4): a(f'v_mul_f32 v{24+k}, s93, v{24+k}')
        for k in range(4): self.R(f'v{24+k}', f'v{24+k}')
        for k in range(4): a(f'v_mul_f32 v{24+k}, v{24+k}, v{CB+k}')
        for k in range(4): self.R(f'v{24+k}', f'v{24+k}')
        self.unpack4(28, 'v20', 'v21')
        for k in range(4): a(f'v_add_f32 v{24+k}, v{24+k}, v{28+k}')
        self.t_write(24)
        a('s_mov_b64 exec, -1')
        self.gemv64(18)
        self.part_write(L_PART2)
        a('s_waitcnt lgkmcnt(0)')
        a('s_barrier')
        self.stamp(8)
        a('v_and_b32 v22, 7, v0')
        a(f'v_mul_u32_u24 v22, {PSTR*4}, v22')
        a('v_lshrrev_b32 v23, 3, v0')
        a('v_lshl_add_u32 v22, v23, 2, v22')
        a('s_lshl_b32 s58, s57, 5')
        a(f's_add_u32 s58, s58, {L_PART2}')
        a('v_add_u32 v22, s58, v22')
        a('ds_read2_b32 v[24:25], v22 offset0:0 offset1:32')
        a('s_waitcnt lgkmcnt(0)')
        self.dpp_red('v_add_f32', [('v24', None), ('v25', None)], ['x1', 'x2', 'hm'])
        self.R('v24', 'v24'); self.R('v25', 'v25')
        c1 = 2 * 0.7978845608028654; c2 = c1 * 0.044715
        a('v_mul_f32 v26, v24, v24')
        a(f'v_mov_b32 v27, {fbits(-c1 * 1.4426950408889634):#x}')
        a(f'v_fmac_f32 v27, {fbits(-c2 * 1.4426950408889634):#x}, v26')
        a('v_mul_f32 v26, v24, v27')
        a('v_exp_f32 v26, v26')
        a('v_add_f32 v26, 1.0, v26')
        a('v_rcp_f32 v26, v26')
        a('v_mul_f32 v24, v24, v26')
        self.R('v24', 'v24')
        a('v_mul_f32 v24, v24, v25')
        a('v_cvt_pk_bf16_f32 v24, v24, v24')
        for j in range(4): a(f'v_and_b32 v{44+j}, v24, v{4+j}')
        for nb in range(9):
            a(f'v_mfma_f32_16x16x32_bf16 v[{WB+4*nb}:{WB+4*nb+3}], v[44:47], v[{WB+72+4*nb}:{WB+72+4*nb+3}], 0')
        a('v_lshrrev_b32 v23, 5, v0')
        a('s_lshl_b32 s58, s57, 1')
        a('v_add_u32 v23, s58, v23')
        a('v_mul_u32_u24 v22, 2304, v23')
        a('v_and_b32 v23, 7, v0')
        a('v_lshl_add_u32 v22, v23, 5, v22')
        a('v_bfe_u32 v23, v0, 4, 1')
        a('v_lshl_add_u32 v22, v23, 4, v22')
        a('s_mov_b32 exec_lo, 0x00ff00ff')
        a('s_mov_b32 exec_hi, 0xff00ff00')
        for nb in range(9):
            a(f'ds_write_b128 v22, v[{WB+4*nb}:{WB+4*nb+3}] offset:{L_DP + nb*256}')
        a('s_mov_b64 exec, -1')
        a('s_waitcnt lgkmcnt(0)')
        a('s_barrier')
        a('s_mov_b64 exec, s[66:67]')
        for k in range(8):
            a(f'ds_read_b128 v[{24+4*k}:{27+4*k}], v18 offset:{L_DP + k*2304}')
        a('s_mul_i32 s58, s2, 2304')
        a(f's_add_u32 s58, s58, {WS_DPART}')
        a('s_waitcnt lgkmcnt(0)')
        for st in (4, 2, 1):
            for w in range(st):
                for r in range(4):
                    a(f'v_add_f32 v{24+4*w+r}, v{24+4*w+r}, v{24+4*(w+st)+r}')
        for r in range(4): a(f'v_or_b32 v{24+r}, 1, v{24+r}')
        a('buffer_store_dwordx4 v[24:27], v18, s[16:19], s58 offen sc1')
        a('s_mov_b64 exec, -1')
        self.stamp(9)
        a('s_cmp_lt_u32 s2, 36'); a('s_cbranch_scc0 L_AUX_END')
        a('s_cmp_lg_u32 s57, 0'); a('s_cbranch_scc1 L_AUX_END')
        a('v_lshrrev_b32 v22, 2, v0')
        a('v_mul_u32_u24 v22, 2304, v22')
        a('v_and_b32 v23, 3, v0')
        a('v_lshl_add_u32 v22, v23, 4, v22')
        a('s_lshl_b32 s58, s2, 6')
        a(f's_add_u32 s58, s58, {WS_DPART}')
        sregs = [f's{72+i}' for i in range(9)]
        for i in range(9): a(f's_add_u32 {sregs[i]}, s58, {i*16*2304}')
        a('s_lshl_b32 s59, s2, 6')
        a('v_lshlrev_b32 v21, 4, v23')
        a('v_add_u32 v21, s59, v21')
        a(f'ds_read_b128 v[10:13], v21 offset:{L_X2}')
        a(f'ds_read_b128 v[14:17], v21 offset:{L_GB}')
        loads = [(WB + 4 * i, 'v22', sregs[i], 0) for i in range(9)]
        self.poll(loads, ('nz',), None, code=11, tmp='v24', sleep=1, maxit=8000)
        self.stamp(10)
        for i in range(1, 9):
            for r in range(4):
                a(f'v_add_f32 v{WB+r}, v{WB+r}, v{WB+4*i+r}')
        self.dpp_red('v_add_f32', [(f'v{WB+r}', f'v{WB+4+r}') for r in range(4)], ['ror4', 'ror8', 'p16', 'p32'])
        a('s_waitcnt lgkmcnt(0)')
        for r in range(4): self.R(f'v{WB+r}', f'v{WB+r}')
        for r in range(4): a(f'v_mul_f32 v{WB+r}, v{14+r}, v{WB+r}')
        for r in range(4): self.R(f'v{WB+r}', f'v{WB+r}')
        for r in range(4): a(f'v_add_f32 v{WB+r}, v{10+r}, v{WB+r}')
        a(f'v_cvt_pk_bf16_f32 v24, v{WB}, v{WB+1}')
        a(f'v_cvt_pk_bf16_f32 v25, v{WB+2}, v{WB+3}')
        a('v_lshrrev_b32 v21, 1, v21')
        a('s_mov_b64 exec, 0xf')
        a('buffer_store_dwordx2 v[24:25], v21, s[52:55], 0 offen')
        a('s_cmp_lg_u32 s2, 0'); a('s_cbranch_scc1 L_F_NOEP')
        a('s_mov_b64 exec, 1')
        a('v_mov_b32 v23, s56')
        a('buffer_store_dword v23, v9, s[16:19], 0 offen sc1')
        a.label('L_F_NOEP')
        a('s_mov_b64 exec, -1')

    def build(self):
        self.prologue()
        self.stream()
        self.aux()
        hdr = []
        ref = open('cdna_kernels/' + NAME + '.s.ref').read().split('\n')
        for ln in ref:
            if ln.startswith('; @launch'): break
            hdr.append(ln)
        hdr.append(f'; @launch grid=(256,1,1) block=(768,1,1) lds={LDS_SIZE}')
        hdr += ['.amdgcn_target "amdgcn-amd-amdhsa--gfx950"', '.text', f'.globl {NAME}_kernel', '.p2align 8',
                f'.type {NAME}_kernel,@function', f'{NAME}_kernel:']
        tail = ['.section .rodata,"a"', '.p2align 6', f'.amdhsa_kernel {NAME}_kernel',
                '  .amdhsa_next_free_vgpr 168', '  .amdhsa_next_free_sgpr 102', '  .amdhsa_accum_offset 168',
                '  .amdhsa_group_segment_fixed_size 0', '  .amdhsa_kernarg_size 112', '  .amdhsa_user_sgpr_count 2',
                '  .amdhsa_user_sgpr_kernarg_segment_ptr 1', '  .amdhsa_system_sgpr_workgroup_id_x 1', '.end_amdhsa_kernel']
        return '\n'.join(hdr) + '\n' + self.a.text() + '\n'.join(tail) + '\n'

if __name__ == '__main__':
    ap = argparse.ArgumentParser()
    ap.add_argument('-o', default='cdna_kernels/' + NAME + '.s')
    ap.add_argument('--L', type=int, default=24)
    ap.add_argument('--W', type=int, default=4)
    ap.add_argument('--WA', type=int, default=6)
    ap.add_argument('--dbg', action='store_true')
    ap.add_argument('--wpol', default='nt')
    ap.add_argument('--gupol', default='nt')
    ap.add_argument('--exp', default='')
    ap.add_argument('--PG', type=int, default=16)
    args = ap.parse_args()
    g = Gen(L=args.L, W=args.W, WA=args.WA, dbg=args.dbg, wpol=args.wpol, gupol=args.gupol, exp=args.exp, PG=args.PG)
    src = g.build()
    open(args.o, 'w').write(src)
    print('wrote', args.o, len(src), 'bytes; nops inserted', g.a.nops)
```
